```python
import torch

def _softmax(x, axis=-1):
    return torch.softmax(x, dim=axis)
def _gelu(x):
    return torch.nn.functional.gelu(x, approximate="tanh")
def _silu(x):
    return torch.nn.functional.silu(x)
def _sigmoid(x):
    return torch.sigmoid(x)
def _layernorm(x, axis=-1, eps=1e-5):
    m = x.mean(dim=axis, keepdim=True)
    v = x.var(dim=axis, keepdim=True, unbiased=False)
    return (x - m) / torch.sqrt(v + eps)
def _scatter_add(tgt, idx, src, axis=0):
    return tgt.clone().index_add_(axis, idx, src)
def _segment_sum(src, seg, n):
    out = torch.zeros((n,) + src.shape[1:], dtype=src.dtype)
    return out.index_add_(0, seg, src)
def _pad(x, pw):
    flat = tuple(v for pair in reversed(pw) for v in pair)
    return torch.nn.functional.pad(x, flat)

kernel_name = 'recurrent_scan__linear_kernel_hedgehog__dense_activation_mish__prompt'

def setup_inputs():

    _w = (lambda a: (lambda t: t.to(torch.bfloat16) if t.is_floating_point() else t)(torch.as_tensor(a)))
    def _A_setup():
        B, S, D, H = 1, 2048, 576, 32
        Dh = D // H
        return {
            "x": _w((lambda *s: torch.randn(*s, dtype=torch.bfloat16) * 0.05)(B, S, D)),
            "wqkv": _w((lambda *s: torch.randn(*s, dtype=torch.bfloat16) * 0.4)(D, 3 * D)),
            "w_phi": _w((lambda *s: torch.randn(*s, dtype=torch.bfloat16) * 0.4)(H, Dh, Dh) * (Dh ** -0.5)),
            "wo": _w((lambda *s: torch.randn(*s, dtype=torch.bfloat16) * 0.2)(D, D)),
        }
    _A_in = _A_setup()

    def _B_setup():
        B, S, D, F = 1, 2048, 576, 4608
        return {
            "x": _w((lambda *s: torch.randn(*s, dtype=torch.bfloat16) * 0.05)(B, S, D)),
            "w1": _w((lambda *s: torch.randn(*s, dtype=torch.bfloat16) * 0.4)(D, F) * (D ** -0.5)),
            "b1": _w((lambda *s: torch.randn(*s, dtype=torch.bfloat16) * 0.4)(F)),
            "w2": _w((lambda *s: torch.randn(*s, dtype=torch.bfloat16) * 0.1)(F, D) * (F ** -0.5)),
        }
    _B_in = _B_setup()

    return {
        "A_x": _A_in["x"],
        "A_wqkv": _A_in["wqkv"],
        "A_w_phi": _A_in["w_phi"],
        "A_wo": _A_in["wo"],
        "B_x": _B_in["x"],
        "B_w1": _B_in["w1"],
        "B_b1": _B_in["b1"],
        "B_w2": _B_in["w2"],
    }

def reference(A_x, A_wqkv, A_w_phi, A_wo, B_x, B_w1, B_b1, B_w2):
    def _A_ref(x, wqkv, w_phi, wo):
        B, S, D = x.shape
        H = 32; Dh = D // H
        qkv = (lambda x, *d: x.permute(*d))((x @ wqkv).reshape(B, S, 3, H, Dh), 2, 0, 3, 1, 4)
        q, k, v = qkv[0], qkv[1], qkv[2]
        pq = torch.einsum("bhsd,hdf->bhsf", q, w_phi)
        pk = torch.einsum("bhsd,hdf->bhsf", k, w_phi)
        phi_q = torch.concatenate([_softmax(pq, axis=-1), _softmax(-pq, axis=-1)], axis=-1)
        phi_k = torch.concatenate([_softmax(pk, axis=-1), _softmax(-pk, axis=-1)], axis=-1)
        kv = torch.einsum("bhsf,bhsd->bhfd", phi_k, v)
        z  = torch.einsum("bhsf->bhf", phi_k)
        num = torch.einsum("bhqf,bhfd->bhqd", phi_q, kv)
        den = torch.einsum("bhqf,bhf->bhq", phi_q, z)[..., None] + 1e-6
        o = num / den
        return (lambda x, *d: x.permute(*d))(o, 0, 2, 1, 3).reshape(B, S, D) @ wo

    def _B_ref(x, w1, b1, w2):
        h = torch.einsum("bsd,df->bsf", x, w1) + b1
        sp = torch.log1p(torch.exp(-torch.abs(h))) + torch.where(h > 0, h, torch.zeros_like(h))
        act = h * torch.tanh(sp)
        return torch.einsum("bsf,fd->bsd", act, w2)

    x = A_x
    xn = _layernorm(x, axis=-1)
    s = _A_ref(xn, A_wqkv, A_w_phi, A_wo)
    g = _silu(_B_ref(xn, B_w1, B_b1, B_w2))
    return x + s * g
```

```python
from gen import *

RING, NRING, PF = 144, 6, 4
WP = 168
PHI_OFF, PHI_ROW = 0, 584
V_OFF, V_ROW = 20480, 328
KVT = SPARE
KVT_PAIR = 3280
WQ_ROW = 3456

vDA = 20
vDO = 22
vP = 23
vB = 26
vRSL = 30


def spin_block(a, lbl, back, off, target, tail):
    L = [f"{lbl}:", f"s_mov_b32 s58, 0", f"{lbl}_l:", "s_sleep 4",
         f"buffer_load_dword v{vT0}, off, {srd(S_DBG)}, s{off} sc1", "s_waitcnt vmcnt(0)", "s_nop 1",
         f"v_readfirstlane_b32 s59, v{vT0}", "s_add_u32 s58, s58, 1", "s_nop 3",
         f"s_cmp_ge_u32 s59, {target}", f"s_cbranch_scc1 {back}",
         "s_cmp_lt_u32 s58, 0x40000", f"s_cbranch_scc1 {lbl}_l", f"s_branch {back}"]
    tail += L


def poll_issue(a, off, reg):
    a(f"buffer_load_dword v{reg}, off, {srd(S_DBG)}, s{off} sc1")


def poll_check(a, reg, off, target, name, tail):
    a(f"v_readfirstlane_b32 s59, v{reg}")
    a(f"s_cmp_lt_u32 s59, {target}")
    a(f"s_cbranch_scc1 L_spin_{name}")
    a.label(f"L_back_{name}")
    spin_block(a, f"L_spin_{name}", f"L_back_{name}", off, target, tail)


def signal(a, off, vone, vsel):
    a(f"buffer_atomic_add v{vone}, v{vsel}, {srd(S_DBG)}, s{off} offen sc1")


def softmax_ops(p, E, M, dst, normalise_both, sreg=None):
    o = []
    mx, mn, sp, sn = M, M + 1, M + 2, M + 3
    o.append(f"v_max3_f32 v{mx}, v{p[0]}, v{p[1]}, v{p[2]}")
    o.append(f"v_min3_f32 v{mn}, v{p[0]}, v{p[1]}, v{p[2]}")
    for i in range(3, 17, 2):
        o.append(f"v_max3_f32 v{mx}, v{mx}, v{p[i]}, v{p[i+1]}")
        o.append(f"v_min3_f32 v{mn}, v{mn}, v{p[i]}, v{p[i+1]}")
    o.append(f"v_max_f32 v{mx}, v{mx}, v{p[17]}")
    o.append(f"v_min_f32 v{mn}, v{mn}, v{p[17]}")
    for i in range(18):
        o.append(f"v_sub_f32 v{E+i}, v{p[i]}, v{mx}")
        o.append(f"v_sub_f32 v{p[i]}, v{mn}, v{p[i]}")
    for i in range(18):
        o.append(f"v_exp_f32 v{E+i}, v{E+i}")
        o.append(f"v_exp_f32 v{p[i]}, v{p[i]}")
    o.append(f"v_add_f32 v{sp}, v{E}, v{E+1}")
    o.append(f"v_add_f32 v{sn}, v{p[0]}, v{p[1]}")
    for i in range(2, 18):
        o.append(f"v_add_f32 v{sp}, v{sp}, v{E+i}")
        o.append(f"v_add_f32 v{sn}, v{sn}, v{p[i]}")
    o.append(f"v_rcp_f32 v{sn}, v{sn}")
    if normalise_both:
        o.append(f"v_rcp_f32 v{sp}, v{sp}")
        o.append(f"v_nop")
        for i in range(18):
            o.append(f"v_mul_f32 v{E+i}, v{E+i}, v{sp}")
    else:
        o.append(f"v_mov_b32 v{sreg}, v{sp}")
        o.append(f"v_mul_f32 v{sn}, v{sn}, v{sp}")
    for i in range(18):
        o.append(f"v_mul_f32 v{p[i]}, v{p[i]}, v{sn}")
    for i in range(9):
        o.append(f"v_cvt_pk_bf16_f32 v{dst+i}, v{E+2*i}, v{E+2*i+1}")
    for i in range(9):
        o.append(f"v_cvt_pk_bf16_f32 v{dst+9+i}, v{p[2*i]}, v{p[2*i+1]}")
    return o


def attn_role(a):
    tail = []
    a(f"s_mov_b32 s{sJ}, s3")
    make_srd(a, S_WA, 66, 576 * WQ_ROW)
    make_srd(a, S_WB, 70, 576 * 1152)
    make_srd(a, S_AUX, 68, 32 * 648)
    a(f"s_mul_i32 s{sT}, s{sJ}, {8*648}")
    a(f"v_lshlrev_b32 v{vT0}, 2, v0")
    NW = 6
    for i in range(NW):
        a(f"v_add_u32 v{vT1}, {1024*i}, v{vT0}")
        a(f"v_min_u32 v{vT1}, {5184-4}, v{vT1}")
        a(f"buffer_load_dword v{32+i}, v{vT1}, {srd(S_AUX)}, s{sT} offen", tag="wphi")
    prologue_x(a)
    a(f"s_mul_i32 s{sA}, s{sW}, {16*WQ_ROW}")
    a(f"s_mul_i32 s{sT2}, s{sJ}, 288")
    a(f"s_add_u32 s{sA}, s{sA}, s{sT2}")
    a(f"s_mul_i32 s{sB}, s{sJ}, {144*1152}")
    a(f"s_lshl_b32 s{sT2}, s{sW}, 6")
    a(f"s_add_u32 s{sB}, s{sB}, s{sT2}")
    a(f"s_add_u32 s{sT2}, s{sJ}, 12")
    a(f"s_mul_i32 s{sT2}, s{sT2}, {SLAB}")
    a(f"s_add_u32 s{sOUT}, s{sOUT}, s{sT2}")
    a(f"s_lshl_b32 s{sC0}, s{sJ}, 2")
    a(f"s_add_u32 s{sC1}, s{sC0}, 16")
    a(f"v_lshlrev_b32 v{vST}, 4, v{vLANE}")
    a(f"v_lshrrev_b32 v{vT1}, 2, v{vLANE}")
    a(f"v_and_b32 v{vT2}, 3, v{vLANE}")
    a(f"v_lshlrev_b32 v{vT2}, 4, v{vT2}")
    a(f"v_mul_u32_u24 v{vDA}, {WQ_ROW}, v{vT1}")
    a(f"v_add_u32 v{vDA}, v{vDA}, v{vT2}")
    a(f"v_bfe_u32 v{vT3}, v{vLANE}, 1, 1")
    a(f"v_mul_u32_u24 v{vT3}, {1152-288}, v{vT3}")
    a(f"v_add_u32 v{vDA+1}, v{vDA}, v{vT3}")
    a(f"v_mul_u32_u24 v{vDO}, 1152, v{vT1}")
    a(f"v_add_u32 v{vDO}, v{vDO}, v{vT2}")
    tr_lanepart(a, vB, (512, False), vT3)
    for i in range(1, 4):
        a(f"v_add_u32 v{vB+i}, {REG*i}, v{vB}")

    eng = Engine(a, RING, NRING, PF)
    pos = {}

    def proj_stage(st, kc, off, tiles, after):
        dma = []
        for t, (col, vo) in enumerate(tiles):
            dma.append([f"s_add_u32 m0, s{sWBASE}, {off + 1024*t}",
                        f"s_add_u32 s{sT}, s{sA}, {kc*64*WQ_ROW + col}",
                        f"buffer_load_dwordx4 v{vo}, {srd(S_WA)}, s{sT} offen lds"])
        n = eng.add_stage(dma, after)
        assert n == st
        pos[st] = off
    T1 = [(1152 + 64 * t, vDA) for t in range(4)] + [(1152 + 256, vDA + 1)]
    T2 = [(2304 + 32 + 64 * t, vDA) for t in range(4)]
    T3 = [(64 * t, vDA) for t in range(5)]
    for s in range(9):
        proj_stage(s, s, (s % 7) * 5120, T1, s - 7)
    for s in range(9):
        proj_stage(9 + s, s, 20480 + (s % 4) * 4096, T2, [4, 5, 6, 6][s] if s < 4 else 9 + s - 4)
    KVDONE = 17.5
    for s in range(9):
        off = 31744 if s in (0, 7) else ((s - 1) % 7) * 5120
        after = {0: 16, 1: KVDONE, 2: KVDONE, 3: KVDONE, 8: 19}.get(s, 18)
        proj_stage(18 + s, s, off, T3, after)
    for s in range(5):
        off = [1, 2, 3, 0, 1][s] * 9216
        dma = []
        for kk in range(9):
            dma.append([f"s_add_u32 m0, s{sWBASE}, {off + 1024*kk}",
                        f"s_add_u32 s{sT}, s{sB}, {kk*16*1152 + s*256}",
                        f"buffer_load_dwordx4 v{vDO}, {srd(S_WB)}, s{sT} offen lds"])
        eng.add_stage(dma, [22, 24, 25, 26, 27][s])
        pos[27 + s] = off

    a(f"v_mov_b32 v40, 0"); a(f"v_mov_b32 v41, 0")
    a(f"v_min_u32 v{vT1}, 44, v{vLANE}")
    a(f"v_mul_u32_u24 v{vT2}, 52, v{vT1}")
    a(f"v_lshrrev_b32 v{vT2}, 8, v{vT2}")
    a(f"v_mul_u32_u24 v{vT3}, {19*40-40}, v{vT2}")
    a(f"v_lshl_add_u32 v{vT3}, v{vT1}, 3, v{vT3}")
    a(f"v_add_u32 v{vT3}, {SPARE}, v{vT3}")
    a(f"ds_write_b64 v{vT3}, v[40:41]")
    a(f"s_mov_b32 s60, 7282")
    a(f"s_mov_b32 s61, 3641")
    for i in range(NW):
        a(f"v_add_u32 v{vT1}, {256*i}, v0")
        a(f"v_min_u32 v{vT1}, 1295, v{vT1}")
        a(f"v_mul_u32_u24 v{vT2}, s60, v{vT1}")
        a(f"v_lshrrev_b32 v{vT2}, 16, v{vT2}")
        a(f"v_mul_u32_u24 v{vT3}, s61, v{vT2}")
        a(f"v_lshrrev_b32 v{vT3}, 16, v{vT3}")
        a(f"v_mul_u32_u24 v{vT3}, 40, v{vT3}")
        a(f"v_lshl_add_u32 v{vT3}, v{vT2}, 2, v{vT3}")
        a(f"v_lshl_add_u32 v{vT3}, v{vT1}, 2, v{vT3}")
        a(f"v_add_u32 v{vT3}, {SPARE+40}, v{vT3}")
        a(f"ds_write_b32 v{vT3}, v{32+i}")
    a.wait(lg=0)
    a.barrier()
    vR, vAa, vHr, vK = 32, 33, 34, 35
    a(f"v_bfe_u32 v{vR}, v{vLANE}, 2, 2")
    a(f"v_lshl_add_u32 v{vR}, v{vHI}, 2, v{vR}")
    a(f"v_bfe_u32 v{vAa}, v{vLANE}, 4, 1")
    a(f"v_bfe_u32 v{vT1}, v{vLANE}, 1, 1")
    a(f"v_lshl_add_u32 v{vAa}, v{vAa}, 1, v{vT1}")
    a(f"v_and_b32 v{vHr}, 1, v{vLANE}")
    a(f"v_mul_u32_u24 v{vT1}, 18, v{vHr}")
    a(f"v_sub_u32 v36, v{vR}, v{vT1}")
    a(f"v_mul_u32_u24 v37, 760, v{vHr}")
    a(f"v_lshl_add_u32 v37, v{vAa}, 3, v37")
    a(f"v_add_u32 v37, {SPARE+40}, v37")
    a(f"v_lshl_add_u32 v{vT1}, v{vAa}, 1, v{vHr}")
    a(f"v_mul_u32_u24 v{vT2}, 18, v{vT1}")
    a(f"v_sub_u32 v38, v{vR}, v{vT2}")
    a(f"v_mul_u32_u24 v39, 760, v{vT1}")
    a(f"v_add_u32 v39, {SPARE+40+32}, v39")
    PQ = [(P, 2 * P + i) for P in range(4) for i in range(3)] + [(4, k) for k in range(9)]
    n = 0
    for f, (tile, k) in enumerate(PQ):
        for eh in range(2):
            t = 40 + (n % 8); n += 1
            c = 16 * k + 8 * eh - (36 * tile if tile < 4 else 0)
            kb, ab = (36, 37) if tile < 4 else (38, 39)
            a(f"v_add_u32 v{t}, {c}, v{kb}" if c >= 0 else f"v_subrev_u32 v{t}, {-c}, v{kb}")
            a(f"v_med3_i32 v{t}, v{t}, -1, 18")
            a(f"v_mad_i32_i24 v{t}, v{t}, 40, v{ab}")
            a(f"ds_read_b64_tr_b16 {ar(WP+4*f+2*eh,2)}, v{t} offset:{1520*tile if tile < 4 else 0}")

    ev = {1: [lambda: eng.issue_stage_now(0)], 2: [lambda: eng.issue_stage_now(1)], 3: [lambda: eng.issue_stage_now(2)],
          4: [lambda: eng.issue_stage_now(3)], 6: [lambda: eng.issue_stage_now(4)], 7: [lambda: eng.issue_stage_now(5)]}
    layernorm(a, eng, ev, "L_att_var", 32)
    a(f"v_mul_f32 v{vRSL}, s{sL2E}, v{vRS}")
    a.wait(lg=0)
    stamp(a, "ln")
    eng.sync(ready=0)
    stamp(a, "go")

    def proj_slots(st0, accs, xv):
        S = []
        nt = len(accs)
        for s in range(9):
            st = st0 + s
            for kl in range(4):
                k = 4 * s + kl
                for t in range(nt):
                    off = pos[st] + 1024 * t
                    def rd(r, off=off, kl=kl):
                        return [f"ds_read_b64_tr_b16 {ar(r+2*eh,2)}, v{vB+kl} offset:{off+256*eh}" for eh in range(2)]
                    def mf(r, t=t, k=k):
                        bop = vr(XR + 4 * k) if xv else ar(4 * k)
                        return f"v_mfma_f32_32x32x16_bf16 {vr(accs[t],16)}, {ar(r)}, {bop}, {'0' if k == 0 else vr(accs[t],16)}"
                    d = dict(st=st, rd=rd, mf=mf, ev=[])
                    if kl == 2 and t == 0:
                        d["ev"].append(lambda st=st: eng.sync(ready=(None if st in (17, 26) else st + 1), consumed=st - 1))
                    S.append(d)
        return S

    AC1 = [32, 48, 208, 224, 240]
    AC2 = [64, 80, 96, 112]
    KP = 128
    E = 168
    M = 186
    PH = 190

    def pack_ops(scale, n):
        o = []
        for i in range(n):
            s = AC1[i // 8] + 2 * (i % 8)
            sc = scale if i < 36 else vRS
            o.append(f"v_mul_f32 v{s}, v{s}, v{sc}")
            o.append(f"v_mul_f32 v{s+1}, v{s+1}, v{sc}")
            o.append(f"v_cvt_pk_bf16_f32 v{KP+i}, v{s}, v{s+1}")
        return o

    def feat_slots():
        S = []
        order = list(range(12, 21)) + list(range(12))
        seen = set()
        for f in order:
            tile, k = PQ[f]
            first = tile not in seen
            seen.add(tile)
            def mf(r, f=f, tile=tile, k=k, first=first):
                return f"v_mfma_f32_32x32x16_bf16 {vr(AC1[tile],16)}, {ar(WP+4*f)}, {vr(KP+4*k)}, {'0' if first else vr(AC1[tile],16)}"
            S.append(dict(st=-1, rd=None, mf=mf, ev=[]))
        return S

    def pregs(P):
        return [AC1[P] + i for i in range(16)] + [AC1[4] + 4 * P, AC1[4] + 4 * P + 1]

    S1 = proj_slots(0, AC1, True)
    S2 = proj_slots(9, AC2, False)
    S3 = proj_slots(18, AC1, False)
    fill = [(f"v_accvgpr_write_b32 a{r}, v{XR+r}", 0, 170) for r in range(144)]
    eng.run(S1, fill, dma_every=3, tail_prefetch=S2[:PF])
    stamp(a, "p1")
    NPK = 24
    FS = feat_slots()
    S2x = S2[:NPK] + FS + S2[NPK:]
    fill = [(t, 2, NPK) for t in pack_ops(vRSL, 40)]
    a(f"v_and_b32 v{vT0}, 31, v{vLANE}")
    a(f"v_mul_u32_u24 v{vP}, {PHI_ROW}, v{vT0}")
    a(f"v_mul_u32_u24 v{vT1}, 72, v{vHI}")
    a(f"v_add3_u32 v{vP}, v{vP}, v{vT1}, s{sWBASE}")
    a(f"v_mul_u32_u24 v{vP+1}, {V_ROW}, v{vT0}")
    a(f"v_add_u32 v{vP+1}, s{sWBASE}, v{vP+1}")
    a(f"v_mul_u32_u24 v{vT1}, 12, v{vHI}")
    a(f"v_add_u32 v{vP+2}, v{vP+1}, v{vT1}")
    a(f"v_lshl_add_u32 v{vP+1}, v{vHI}, 3, v{vP+1}")
    lo = NPK + 9 + 3 + 2
    hi = len(S2x)
    for P in range(4):
        e0 = lo + 3 * P
        for t in softmax_ops(pregs(P), E, M, PH, True):
            fill.append((t, e0, hi))
        for i in range(9):
            fill.append((f"ds_write_b64 v{vP}, {vr(PH+2*i,2)} offset:{PHI_OFF+144*P+8*i}", e0, hi))
    eng.run(S2x, fill, dma_every=3)
    stamp(a, "p2")
    eng.issue_stage_now(18)
    eng.sync(consumed=17)
    def v_write(reg, c0):
        o0 = (c0 // 18) * 40 + (c0 % 18) * 2
        o1 = ((c0 + 4) // 18) * 40 + ((c0 + 4) % 18) * 2
        assert o1 - o0 in (8, 12)
        a(f"ds_write_b32 v{vP+1 if o1-o0 == 8 else vP+2}, v{reg} offset:{V_OFF+o0}")
    for i in range(4):
        v_write(KP + 36 + i, 8 * (i >> 1) + 2 * (i & 1))
    for t in range(4):
        for q in range(8):
            s = AC2[t] + 2 * q
            a(f"v_mul_f32 v{s}, v{s}, v{vRS}")
            a(f"v_mul_f32 v{s+1}, v{s+1}, v{vRS}")
        for q in range(8):
            s = AC2[t] + 2 * q
            a(f"v_cvt_pk_bf16_f32 v{s}, v{s}, v{s+1}")
        for q in range(8):
            v_write(AC2[t] + 2 * q, 16 + 32 * t + 8 * (q >> 1) + 2 * (q & 1))
    a(f"v_mov_b32 v{E}, 0x3f80")
    a(f"v_mul_u32_u24 v{vT1}, {160-8}, v{vHI}")
    a(f"v_add_u32 v{vT1}, v{vT1}, v{vP+1}")
    for h in range(4):
        a(f"ds_write_b32 v{vT1}, v{E} offset:{V_OFF+40*h+36}")
    a(f"v_lshrrev_b32 v{vT0}, 2, v{vLANE}")
    a(f"v_and_b32 v{vT1}, 3, v{vLANE}")
    a(f"v_lshlrev_b32 v{vT1}, 3, v{vT1}")
    a(f"s_mul_i32 s60, s{sW}, 144")
    a(f"s_mul_i32 s61, s{sW}, 80")
    a(f"v_mul_u32_u24 v{vP}, {PHI_ROW}, v{vT0}")
    a(f"v_add3_u32 v{vP}, v{vP}, v{vT1}, s60")
    a(f"v_mul_u32_u24 v{vP+1}, {V_ROW}, v{vT0}")
    a(f"v_add3_u32 v{vP+1}, v{vP+1}, v{vT1}, s61")
    a.wait(lg=0)
    a.barrier()
    KA, KB, KD = 32, 80, 144
    for ks in range(4):
        if ks:
            a(f"v_add_u32 v{vP}, {REG}, v{vP}")
            a(f"v_add_u32 v{vP+1}, {REG}, v{vP+1}")
        base = 32 + (ks & 1) * 48
        for hh in range(2):
            for ft in range(3):
                r = base + (hh * 5 + ft) * 4
                for eh in range(2):
                    a(f"ds_read_b64_tr_b16 {vr(r+2*eh,2)}, v{vP} offset:{PHI_OFF+72*hh+32*ft+16*eh*PHI_ROW}")
            for dt in range(2):
                r = base + (hh * 5 + 3 + dt) * 4
                for eh in range(2):
                    a(f"ds_read_b64_tr_b16 {vr(r+2*eh,2)}, v{vP+1} offset:{V_OFF+40*hh+32*dt+16*eh*V_ROW}")
        if ks:
            kv_mfmas(a, 32 + ((ks - 1) & 1) * 48, KD, ks - 1)
    kv_mfmas(a, 32 + 48, KD, 3)
    a.wait(lg=0)
    eng.sync(ready=18, consumed=KVDONE)
    eng.issue_stage_now(19)
    a(f"v_and_b32 v{vT0}, 15, v{vLANE}")
    a(f"v_lshrrev_b32 v{vT1}, 4, v{vLANE}")
    a(f"v_mul_u32_u24 v{vP}, 144, v{vT0}")
    a(f"v_lshl_add_u32 v{vP}, v{vT1}, 4, v{vP}")
    a(f"v_mov_b32 v{vT2}, 0x7f000000")
    a(f"v_cmp_gt_u32 vcc, 4, v{vT0}")
    a(f"v_cndmask_b32 v{vP+1}, v{vT2}, v{vP}, vcc")
    a(f"v_cmp_eq_u32 vcc, 0, v{vT1}")
    a(f"v_cndmask_b32 v{vP+2}, v{vT2}, v{vP}, vcc")
    a(f"v_cndmask_b32 v{vT3}, v{vT2}, v{vP+1}, vcc")
    a(f"s_lshl_b32 s60, s{sJ}, 4")
    a(f"s_add_u32 s60, s60, s{sRB}")
    a(f"s_mul_i32 s60, s60, 23040")
    a(f"s_mul_i32 s61, s{sW}, 5760")
    a(f"s_add_u32 s60, s60, s61")
    a(f"s_add_u32 s60, s60, {KVP_OFF}")
    a(f"s_add_u32 s61, s60, 2880")
    for hh in range(2):
        for ft in range(3):
            for dt in range(2):
                vo = {(0, 0): vP, (0, 1): vP + 1, (1, 0): vP + 2, (1, 1): vT3}[(int(ft == 2), dt)]
                a(f"buffer_store_dwordx4 {vr(KD+(hh*6+ft*2+dt)*4)}, v{vo}, {srd(S_WS)}, s{60+hh} offen offset:{dt*2304+ft*64} sc1", tag="kvp")
    stamp(a, "kv")
    vONE, vSEL, vPOLL = 23, 24, 25
    a(f"v_mov_b32 v{vT2}, 0x7f000000")
    a(f"v_cmp_eq_u32 vcc, 0, v0")
    a(f"v_mov_b32 v{vONE}, 1")
    a(f"v_cndmask_b32 v{vSEL}, v{vT2}, v0, vcc")
    RD = 64
    vRA, vRB = 100, 101
    a(f"v_min_u32 v{vT0}, 44, v{vLANE}")
    a(f"s_mul_i32 s60, s{sW}, 45")
    a(f"v_add_u32 v{vT0}, s60, v{vT0}")
    a(f"v_lshlrev_b32 v{vRA}, 3, v{vT0}")
    a(f"s_mov_b32 s61, 3641")
    a(f"v_mul_u32_u24 v{vT1}, s61, v{vT0}")
    a(f"v_lshrrev_b32 v{vT1}, 16, v{vT1}")
    a(f"v_lshlrev_b32 v{vRB}, 2, v{vT0}")
    a(f"v_lshl_add_u32 v{vRB}, v{vT1}, 3, v{vRB}")
    a(f"s_mul_i32 s{sC2}, s{sJ}, {16*23040}")
    a(f"s_mul_i32 s61, s{sRB}, 1440")
    a(f"s_add_u32 s{sC2}, s{sC2}, s61")
    a(f"s_add_u32 s{sC2}, s{sC2}, {KVP_OFF}")
    a(f"s_mul_i32 s{sC3}, s{sJ}, 12800")
    a(f"s_add_u32 s{sC3}, s{sC3}, {KVG_OFF}")

    def ev_sig1():
        signal(a, sC0, vONE, vSEL)
    def replace_sync(slot, st, post):
        slot["ev"] = [lambda: eng.sync(ready=st + 1, consumed=st - 1, vm0=True), post]
    replace_sync(S3[30], 19, ev_sig1)
    S3[70]["ev"].append(lambda: poll_issue(a, sC0, vPOLL))
    def ev_hop1():
        poll_check(a, vPOLL, sC0, 16, "h1", tail)
        for r in range(16):
            eng.vq.append(([f"s_add_u32 s62, s{sC2}, {23040*r}",
                            f"buffer_load_dwordx2 {vr(RD+2*r,2)}, v{vRA}, {srd(S_WS)}, s62 offen sc1"], "sl"))
    S3[92]["ev"].append(ev_hop1)
    fill = []
    for r in range(1, 16):
        fill.append((f"v_add_f32 v{RD}, v{RD}, v{RD+2*r}", 150, 164))
        fill.append((f"v_add_f32 v{RD+1}, v{RD+1}, v{RD+2*r+1}", 150, 164))
    fill.append((f"v_cvt_pk_bf16_f32 v{RD}, v{RD}, v{RD+1}", 150, 164))
    def q_kvg():
        eng.vq.append(([f"s_mul_i32 s62, s{sRB}, 800", f"s_add_u32 s62, s62, s{sC3}",
                        f"buffer_store_dword v{RD}, v{vRB}, {srd(S_WS)}, s62 offen sc1"], "kvg"))
    fill.append((q_kvg, 150, 164))
    eng.run(S3, fill, dma_every=2)
    eng.flush_vq()
    stamp(a, "p3")
    for t in pack_ops(vRSL, 36):
        a(t)
    eng.sync(consumed=26, vm0=True)
    signal(a, sC1, vONE, vSEL)
    eng.run(feat_slots(), [], dma_every=2)
    FQ = 64
    SS = 190
    KL = 144
    for P in range(4):
        a(f"v_mov_b32 v{FQ+20*P+18}, 0")
        a(f"v_mov_b32 v{FQ+20*P+19}, 0")
    a(f"v_min_u32 v{vT0}, 49, v{vLANE}")
    a(f"s_mul_i32 s60, s{sW}, 3200")
    a(f"s_add_u32 s62, s60, s{sC3}")
    a(f"v_lshlrev_b32 v{vT1}, 4, v{vT0}")
    a(f"s_mul_i32 s60, s{sW}, {KVT_PAIR}")
    a(f"s_add_u32 s60, s60, {KVT}")
    a(f"v_add_u32 v{vT2}, s60, v{vT1}")
    a(f"v_mul_u32_u24 v{vT3}, 52, v{vT0}")
    a(f"v_lshrrev_b32 v{vT3}, 8, v{vT3}")
    a(f"v_mul_u32_u24 v{vT3}, 5, v{vT3}")
    a(f"v_sub_u32 v{vT3}, v{vT0}, v{vT3}")
    a(f"v_cmp_ne_u32 s[56:57], 4, v{vT3}")
    a(f"v_mov_b32 v194, v{vT1}")
    a(f"v_mov_b32 v195, v{vT2}")
    for P in range(4):
        for t in softmax_ops(pregs(P), E, M, FQ + 20 * P, False, SS + P):
            a(t)
        eng.issue_dma(5)
        if P == 0:
            poll_issue(a, sC1, vPOLL)
        elif P == 1:
            poll_check(a, vPOLL, sC1, 16, "h2", tail)
            for i in range(4):
                a(f"buffer_load_dwordx4 {vr(KL+4*i)}, v194, {srd(S_WS)}, s62 offen offset:{800*i} sc1")
        elif P == 2:
            for i in range(4):
                a(f"v_cndmask_b32 v{KL+4*i+2}, 0, v{KL+4*i+2}, s[56:57]")
                a(f"v_cndmask_b32 v{KL+4*i+3}, 0, v{KL+4*i+3}, s[56:57]")
                a(f"ds_write_b128 v195, {vr(KL+4*i)} offset:{800*i}")
            for i in range(4):
                a(f"v_mov_b32 v{KL+16+i}, 0")
            a(f"v_min_u32 v{vT0}, 4, v{vLANE}")
            a(f"v_lshlrev_b32 v{vT0}, 4, v{vT0}")
            a(f"v_add_u32 v{vT0}, s60, v{vT0}")
            a(f"ds_write_b128 v{vT0}, {vr(KL+16)} offset:3200")
    stamp(a, "smq")
    vI = 160
    a(f"v_bfe_u32 v{vT0}, v{vLANE}, 2, 1")
    a(f"v_bfe_u32 v{vT1}, v{vLANE}, 3, 2")
    a(f"v_and_b32 v{vT2}, 3, v{vLANE}")
    a(f"v_cmp_eq_u32 vcc, v{vT0}, v{vHI}")
    a(f"v_mul_u32_u24 v{vI}, 1600, v{vT0}")
    a(f"v_mul_u32_u24 v{vT3}, 80, v{vT2}")
    a(f"v_add_u32 v{vI}, v{vI}, v{vT3}")
    a(f"v_add_u32 v{vI}, {KVT}, v{vI}")
    a(f"v_mul_u32_u24 v{vT3}, 320, v{vT1}")
    a(f"v_add_u32 v{vI+1}, v{vI}, v{vT3}")
    a(f"v_mov_b32 v{vI+6}, {KVT+3200}")
    a(f"v_cndmask_b32 v{vI+1}, v{vI+6}, v{vI+1}, vcc")
    a(f"v_add_u32 v{vI}, 1280, v{vI}")
    a(f"v_cndmask_b32 v{vI}, v{vI+6}, v{vI}, vcc")
    for P in range(4):
        a(f"v_cmp_eq_u32 vcc, {P}, v{vT1}")
        a(f"v_cndmask_b32 v{vI+2+P}, v{vI+6}, v{vI}, vcc")
    a.wait(lg=0)
    eng.sync(ready=27)
    NS = []
    for tile_kind in (1, 0):
        for P in range(4):
            for k in range(5):
                acc = AC1[4] if tile_kind else AC1[P]
                first = (P == 0 and k == 0) if tile_kind else k == 0
                ad = vI + 2 + P if tile_kind else vI + 1
                def rd(r, ad=ad, P=P, k=k):
                    return [f"ds_read_b128 {ar(r)}, v{ad} offset:{KVT_PAIR*P+16*k}"]
                def mf(r, acc=acc, first=first, P=P, k=k):
                    return f"v_mfma_f32_32x32x16_bf16 {vr(acc,16)}, {ar(r)}, {vr(FQ+20*P+4*k)}, {'0' if first else vr(acc,16)}"
                NS.append(dict(st=-1, rd=rd, mf=mf, ev=[]))
    vW = 168
    tr_lanepart(a, vW, (18 * 64, True), vT3)
    a(f"v_bfe_u32 v{vT3}, v{vLANE}, 3, 1")
    a(f"v_mul_u32_u24 v{vT3}, {18*64}, v{vT3}")
    a(f"v_add_u32 v{vW+4}, v{vW}, v{vT3}")
    for i in range(1, 4):
        a(f"v_add_u32 v{vW+i}, {REG*i}, v{vW}")
        a(f"v_add_u32 v{vW+4+i}, {REG*i}, v{vW+4}")
    OP = 176
    OPR = [176 + i for i in range(32)] + [144 + i for i in range(4)]
    fill = []
    for P in range(4):
        L = AC1[4] + 4 * P
        e0 = 22
        fill.append((f"v_fmac_f32 v{L+2}, 0x358637bd, v{SS+P}", e0, 40))
        fill.append((f"v_rcp_f32 v{L+2}, v{L+2}", e0, 40))
    eng.run(NS, fill, dma_every=2)
    SV = [AC1[4] + 4 * P + 2 for P in range(4)]
    for P in range(4):
        p = pregs(P)
        for i in range(18):
            a(f"v_mul_f32 v{p[i]}, v{p[i]}, v{SV[P]}")
        for i in range(9):
            a(f"v_cvt_pk_bf16_f32 v{OPR[9*P+i]}, v{p[2*i]}, v{p[2*i+1]}")
    stamp(a, "o")
    WA = [(64, 80), (96, 112)]
    STG = 128
    WS_ = []
    fill = []
    for dp in range(9):
        st = 27 + dp // 2
        for k in range(9):
            for t in range(2):
                piece = (2 * dp + t) % 4
                acc = WA[dp & 1][t]
                def rd(r, st=st, piece=piece, k=k):
                    o = []
                    for eh in range(2):
                        n0 = 8 * k + 4 * eh
                        strad = n0 in (16, 52)
                        o.append(f"ds_read_b64_tr_b16 {ar(r+2*eh,2)}, v{vW+(4 if strad else 0)+piece} offset:{pos[st]+(n0+18*(n0//18))*64}")
                    return o
                def mf(r, acc=acc, k=k):
                    return f"v_mfma_f32_32x32x16_bf16 {vr(acc,16)}, {ar(r)}, {vr(OPR[4*k])}, {'0' if k == 0 else vr(acc,16)}"
                d = dict(st=st, rd=rd, mf=mf, ev=[])
                if dp % 2 == 1 and k == 0 and t == 0:
                    d["ev"].append(lambda st=st: eng.sync(ready=st + 1, consumed=st - 1))
                WS_.append(d)
        if dp >= 1:
            lo = 18 * dp
            fill += out_store_fillers(eng, WA[(dp - 1) & 1], STG + 0 * (dp & 1), (dp - 1) * 4096, lo + 3, lo + 12)
    eng.run(WS_, fill, dma_every=2)
    stamp(a, "g2")
    eng.flush_vq()
    for f in out_store_fillers(eng, WA[0], STG, 8 * 4096, 0, 0):
        eng._fill(f)
        eng.flush_vq()
    if PROF:
        a.wait(vm=0)
    stamp(a, "end")
    stamp_flush(a, srd(S_WS), MAIN_ID)
    a("s_branch L_end")
    for t in tail:
        a.raw(t)


def kv_mfmas(a, base, KD, ks):
    for hh in range(2):
        for ft in range(3):
            for dt in range(2):
                d = KD + (hh * 6 + ft * 2 + dt) * 4
                a(f"v_mfma_f32_16x16x32_bf16 {vr(d)}, {vr(base+(hh*5+ft)*4)}, {vr(base+(hh*5+3+dt)*4)}, {'0' if ks == 0 else vr(d)}")
```

```python
from gen import *


def comb_kernel(a):
    a("s_cmp_ge_u32 s2, 288")
    a("s_cbranch_scc1 L_cend")
    stamp(a, 0)
    a("s_load_dwordx2 s[4:5], s[0:1], 0")
    a("s_load_dwordx2 s[6:7], s[0:1], 64")
    a("s_load_dwordx2 s[24:25], s[0:1], 80")
    a("v_and_b32 v1, 63, v0")
    a("v_lshrrev_b32 v2, 6, v0")
    a("v_readfirstlane_b32 s20, v2")
    a("s_lshl_b32 s21, s2, 2")
    a("s_add_u32 s20, s20, s21")
    a("s_mul_i32 s21, s20, 3641")
    a("s_lshr_b32 s21, s21, 16")
    a("s_mul_i32 s22, s21, 18")
    a("s_sub_u32 s22, s20, s22")
    a("s_lshl_b32 s23, s20, 11")
    a("v_lshlrev_b32 v3, 4, v1")
    make_srd(a, 8, 24, WS_SIZE)
    make_srd(a, 12, 4, SLAB)
    make_srd(a, 16, 6, SLAB)
    D = 16
    for j in range(16):
        for hf in range(2):
            a(f"buffer_load_dwordx4 {vr(D+8*j+4*hf)}, v3, s[8:11], s23 offen offset:{1024*hf}")
        if j < 15:
            a(f"s_add_u32 s23, s23, {SLAB}")
    a("v_and_b32 v4, 31, v1")
    a("v_mul_u32_u24 v4, 1152, v4")
    a("v_lshrrev_b32 v5, 5, v1")
    a("v_lshl_add_u32 v4, v5, 4, v4")
    a(f"s_mul_i32 s21, s21, {32*1152}")
    a("s_lshl_b32 s22, s22, 6")
    a("s_add_u32 s21, s21, s22")
    a("buffer_load_dwordx4 v[8:11], v4, s[12:15], s21 offen")
    a("buffer_load_dwordx4 v[12:15], v4, s[12:15], s21 offen offset:32")
    a("s_mov_b32 s26, 0x00003f80")
    a("s_mov_b32 s27, 0x3f800000")
    a("s_mov_b32 s28, 0xffff0000")
    a(f"s_mov_b32 s29, {LOG2E | 0x80000000:#x}")
    G = D + 128
    S = G + 16
    for first, acc in ((0, G), (12, S)):
        last = 12 if first == 0 else 16
        for q in range(8):
            a(f"v_lshlrev_b32 v{acc+2*q}, 16, v{D+8*first+q}")
            a(f"v_and_b32 v{acc+2*q+1}, s28, v{D+8*first+q}")
        for j in range(first + 1, last):
            for q in range(8):
                a(f"v_dot2c_f32_bf16 v{acc+2*q}, s26, v{D+8*j+q}")
                a(f"v_dot2c_f32_bf16 v{acc+2*q+1}, s27, v{D+8*j+q}")
        if first == 0:
            E = D
            for i in range(16): a(f"v_mul_f32 v{E+i}, s29, v{G+i}")
            for i in range(16): a(f"v_exp_f32 v{E+i}, v{E+i}")
            for i in range(16): a(f"v_add_f32 v{E+i}, 1.0, v{E+i}")
            for i in range(16): a(f"v_rcp_f32 v{E+i}, v{E+i}")
            for i in range(16): a(f"v_mul_f32 v{G+i}, v{G+i}, v{E+i}")
    X = D + 16
    for q in range(8):
        a(f"v_lshlrev_b32 v{X+2*q}, 16, v{8+q}")
        a(f"v_and_b32 v{X+2*q+1}, s28, v{8+q}")
    for i in range(16): a(f"v_fmac_f32 v{X+i}, v{S+i}, v{G+i}")
    for q in range(8): a(f"v_cvt_pk_bf16_f32 v{8+q}, v{X+2*q}, v{X+2*q+1}")
    a("buffer_store_dwordx4 v[8:11], v4, s[16:19], s21 offen")
    a("buffer_store_dwordx4 v[12:15], v4, s[16:19], s21 offen offset:32")
    if PROF:
        a.wait(vm=0)
    for i in range(1, NST):
        stamp(a, i)
    stamp_flush(a, "s[8:11]", [f"s_lshl_b32 s{sT}, s20, 5", f"s_add_u32 s{sT}, s{sT}, {PROF_OFF + 65536}"], vt=5)
    a.label("L_cend")
    a.raw("s_endpgm")
    return S + 16
```

```python
import re

TRANS = ("v_exp_f32", "v_log_f32", "v_rcp_f32", "v_rsq_f32", "v_sqrt_f32", "v_sin_f32", "v_cos_f32")
RMW_DST = ("v_fmac_f32", "v_dot2c_f32_bf16", "v_fmac_f32_e32")
_reg_re = re.compile(r"^(-?\|?)([vas])(?:(\d+)|\[(\d+):(\d+)\])\|?$")


def regs_of(tok):
    tok = tok.strip()
    if tok.startswith("abs(") or tok.startswith("-abs("):
        tok = tok[tok.index("(") + 1:-1]
    if tok in ("vcc", "vcc_lo", "vcc_hi"):
        return [("s", "vcc")]
    if tok == "m0":
        return [("s", "m0")]
    if tok in ("exec", "exec_lo", "exec_hi"):
        return [("s", "exec")]
    m = _reg_re.match(tok)
    if not m:
        return []
    k = m.group(2)
    if m.group(3) is not None:
        return [(k, int(m.group(3)))]
    return [(k, i) for i in range(int(m.group(4)), int(m.group(5)) + 1)]


class Ins:
    __slots__ = ("op", "cls", "wr", "rd", "srcc", "ab", "passes", "pos", "wide_data")


def parse(text):
    t = text.strip()
    parts = t.split(None, 1)
    op = parts[0]
    rest = parts[1] if len(parts) > 1 else ""
    toks = [x.strip() for x in rest.split(",")] if rest else []
    mods = []
    if toks:
        last = toks[-1].split()
        if last:
            toks[-1] = last[0]
            mods = last[1:]
    I = Ins()
    I.op = op; I.wr = set(); I.rd = set(); I.srcc = set(); I.ab = set(); I.passes = 0; I.wide_data = set()
    R = [regs_of(x) for x in toks]
    if op.startswith("v_mfma"):
        I.cls = "mfma"
        I.passes = 8 if "32x32x16" in op else 4
        I.wr.update(R[0]); I.ab.update(R[1]); I.ab.update(R[2]); I.srcc.update(R[3])
        I.rd = I.ab | I.srcc
    elif op.startswith("v_"):
        I.cls = "valu"
        if op.startswith("v_permlane") and "swap" in op:
            I.wr.update(R[0]); I.wr.update(R[1]); I.rd.update(R[0]); I.rd.update(R[1])
        elif op.startswith(("v_add_co", "v_sub_co", "v_addc_co")):
            I.wr.update(R[0]); I.wr.update(R[1])
            for r in R[2:]: I.rd.update(r)
        elif op == "v_nop":
            pass
        else:
            I.wr.update(R[0])
            for r in R[1:]: I.rd.update(r)
            if op in RMW_DST: I.rd.update(R[0])
    elif op.startswith("ds_"):
        I.cls = "ds"
        if op.startswith("ds_read") or op.startswith("ds_bpermute") or op.startswith("ds_swizzle"):
            I.wr.update(R[0])
            for r in R[1:]: I.rd.update(r)
        else:
            for r in R: I.rd.update(r)
    elif op.startswith(("buffer_", "global_")):
        I.cls = "vmem"
        lds = "lds" in mods or op.startswith("global_load_lds")
        if op in ("buffer_wbl2", "buffer_inv"):
            pass
        elif "load" in op and not lds:
            I.wr.update(R[0])
            for r in R[1:]: I.rd.update(r)
        elif "atomic" in op:
            for r in R: I.rd.update(r)
            if "sc0" in mods: I.wr.update(R[0])
        else:
            for r in R: I.rd.update(r)
            if lds: I.rd.add(("s", "m0"))
            if "store" in op and ("x4" in op or "x3" in op):
                I.wide_data.update(R[0] if op.startswith("buffer") else R[1])
    elif op.startswith("s_"):
        I.cls = "salu"
        if op.startswith(("s_load", "s_memtime", "s_memrealtime", "s_buffer_load")):
            I.cls = "smem"
            I.wr.update(R[0])
            for r in R[1:]: I.rd.update(r)
        elif op.startswith(("s_cmp", "s_cbranch", "s_branch", "s_barrier", "s_nop", "s_waitcnt", "s_sleep", "s_setprio", "s_endpgm", "s_bitcmp")):
            for r in R: I.rd.update(r)
        else:
            I.wr.update(R[0])
            for r in R[1:]: I.rd.update(r)
            if "saveexec" in op: I.wr.add(("s", "exec"))
    else:
        raise ValueError("unknown instruction: " + text)
    return I


class Asm:
    def __init__(self):
        self.lines = []
        self.pos = 0
        self.hist = []
        self.lg = []
        self.vm = []
        self.smem = None
        self.stats = {}

    def raw(self, text):
        self.lines.append(text)

    def label(self, name):
        self.lines.append(name + ":")

    def comment(self, text):
        pass

    def _push(self, text, I, states=1):
        I.pos = self.pos
        self.pos += states
        self.hist.append(I)
        if len(self.hist) > 40:
            self.hist.pop(0)
        self.lines.append(text)
        self.stats[I.cls] = self.stats.get(I.cls, 0) + 1

    def nop(self, n):
        while n > 0:
            k = min(n, 16)
            self._push(f"s_nop {k-1}", parse("s_nop 0"), k)
            n -= k

    def wait(self, vm=None, lg=None):
        parts = []
        if vm is not None and vm < len(self.vm):
            vm = min(vm, 63)
            parts.append(f"vmcnt({vm})")
            self.vm = self.vm[len(self.vm) - vm:] if vm else []
        if lg is not None and (lg < len(self.lg) or self.smem is not None):
            if self.smem is not None:
                lg = 0
                self.smem = None
            lg = min(lg, 15)
            parts.append(f"lgkmcnt({lg})")
            self.lg = self.lg[len(self.lg) - lg:] if lg else []
        if parts:
            self._push("s_waitcnt " + " ".join(parts), parse("s_waitcnt x"))

    def vm_count_after(self, tag):
        idx = None
        for i, (d, t) in enumerate(self.vm):
            if t == tag: idx = i
        if idx is None: return None
        return len(self.vm) - 1 - idx

    def wait_tag(self, tag):
        n = self.vm_count_after(tag)
        if n is not None:
            self.wait(vm=n)

    def wait_regs(self, regs):
        regs = set(regs)
        vm = lg = None
        for i, (d, t) in enumerate(self.vm):
            if d & regs: vm = len(self.vm) - 1 - i
        for i, d in enumerate(self.lg):
            if d & regs: lg = len(self.lg) - 1 - i
        if self.smem is not None and self.smem & regs:
            lg = 0
        self.wait(vm=vm, lg=lg)

    def sync_unknown(self):
        self.vm = []; self.lg = []; self.smem = None

    def _need(self, I):
        need = 0
        for P in self.hist:
            d = self.pos - P.pos - 1
            if P.cls == "salu" and P.op == "s_nop":
                continue
            req = 0
            pw = P.wr
            touch = I.rd | I.wr
            if P.cls == "valu":
                vw = {r for r in pw if r[0] != "s"}
                sw = {r for r in pw if r[0] == "s"}
                if I.cls == "mfma" and vw & I.rd: req = max(req, 2)
                if P.op in TRANS and vw & I.rd: req = max(req, 1)
                if I.op.startswith("v_permlane") and vw & I.rd: req = max(req, 2)
                if I.op.startswith(("v_readlane", "v_readfirstlane")) and vw & I.rd: req = max(req, 1)
                if "dpp" in I.op and vw & I.rd: req = max(req, 2)
                if sw & I.rd:
                    if I.cls == "valu": req = max(req, 2)
                    elif I.cls == "vmem": req = max(req, 5)
                    else: req = max(req, 2)
                if ("s", "vcc") in sw and I.op.startswith("s_cbranch_vcc"): req = max(req, 5)
                if P.op.startswith("v_dot"):
                    if vw & touch:
                        same_c = (I.op == P.op)
                        if not same_c: req = max(req, 3)
                        elif P.op == "v_dot2_f32_bf16" or True:
                            pass
            elif P.cls == "mfma":
                lat = 12 if P.passes == 8 else 8
                if I.cls == "mfma":
                    if pw & I.ab: req = max(req, lat)
                    if pw & I.srcc and not (I.srcc == pw and I.passes == P.passes): req = max(req, lat - 2)
                    if pw & I.wr and not (I.wr == pw and I.passes == P.passes): req = max(req, lat - 2)
                elif pw & touch:
                    req = max(req, lat)
                if I.cls == "valu" and P.srcc & I.wr: req = max(req, 7 if P.passes == 8 else 3)
            elif P.cls == "salu":
                if ("s", "m0") in pw and ("s", "m0") in I.rd and I.cls == "vmem": req = max(req, 1)
            elif P.cls == "vmem":
                if P.wide_data & I.wr: req = max(req, 2)
            if req - d > need: need = req - d
        return need

    def __call__(self, text, tag=None):
        I = parse(text)
        self.wait_regs(I.rd | I.wr)
        n = self._need(I)
        if n > 0:
            self.nop(n)
        self._push(text, I)
        if I.cls == "ds":
            self.lg.append(set(I.wr))
        elif I.cls == "vmem":
            self.vm.append((set(I.wr), tag))
        elif I.cls == "smem":
            self.smem = (self.smem or set()) | I.wr
        return I

    def barrier(self):
        self("s_barrier")
```

```python
import sys, math
from emit import Asm, parse, TRANS

KN = "recurrent_scan__linear_kernel_hedgehog__dense_activation_mish__prompt"
LOG2E = 0x3FB8AA3B
LN2 = 0x3F317218
M2LN2 = 0xBFB17218
SLAB = 2048 * 576 * 2
KVP_OFF = 40 << 20
KVG_OFF = 44 << 20
WS_SIZE = 48 << 20
REG = 36864
SPARE = 4 * REG
LDS_BYTES = 163840

S_X, S_WA, S_WB, S_WS, S_AUX, S_DBG = 8, 12, 16, 20, 24, 28
sW, sRB, sJ, sWBASE = 32, 33, 34, 35
sXo0, sXo1 = 36, 37
sA, sB, sOUT, sT, sT2 = 38, 39, 40, 41, 42
sLO, sHI, sONES, sMASK, sL2E, sM2LN2 = 44, 45, 46, 47, 48, 49
sC0, sC1, sC2, sC3 = 50, 51, 52, 53


import os
PROF = int(os.environ.get("PROF", "0"))
PROF_OFF = 46 << 20
NST = 7


STAMPS = os.environ.get("STAMPS", "start,stats,ln,go,g1,g2,end").split(",")


def stamp(a, name):
    if PROF and (isinstance(name, int) or name in STAMPS):
        i = name if isinstance(name, int) else STAMPS.index(name)
        a(f"s_memrealtime s[{86+2*i}:{87+2*i}]")
        a.wait(lg=0)


def stamp_flush(a, wsrd, idreg_expr, vt=3):
    if not PROF:
        return
    for t in idreg_expr:
        a(t)
    for i in range(NST):
        a(f"v_mov_b32 v{vt}, s{86+2*i}")
        a(f"v_mov_b32 v{vt+1}, 0")
        a(f"buffer_store_dword v{vt}, v{vt+1}, {wsrd}, s{sT} offen offset:{4*i}")


MAIN_ID = [f"s_lshl_b32 s{sT}, s2, 2", f"s_add_u32 s{sT}, s{sT}, s{sW}", f"s_lshl_b32 s{sT}, s{sT}, 5", f"s_add_u32 s{sT}, s{sT}, {PROF_OFF}"]


def srd(n):
    return f"s[{n}:{n+3}]"


def vr(b, n=4):
    return f"v[{b}:{b+n-1}]"


def ar(b, n=4):
    return f"a[{b}:{b+n-1}]"


def cost(text):
    op = text.split()[0]
    if op in TRANS or op.startswith("v_permlane"):
        return 8
    if op.startswith("s_"):
        return 0
    return 4


class Stage:
    def __init__(self, dma, after):
        self.dma = dma
        self.after = after


class Engine:
    def __init__(self, a, ring_base, ring_n, pf):
        self.a = a
        self.ring_base, self.ring_n, self.pf = ring_base, ring_n, pf
        self.stages = []
        self.dq = []
        self.consumed = -1
        self.ready = -1
        self.fcount = 0
        self.vq = []
        self.pending_reads = []

    def add_stage(self, dma, after):
        self.stages.append(Stage(dma, after))
        n = len(self.stages) - 1
        for d in dma:
            self.dq.append((n, d))
        return n

    def dma_avail(self):
        return bool(self.dq) and self.stages[self.dq[0][0]].after <= self.consumed

    def issue_dma(self, n=1):
        while n > 0 and self.dma_avail():
            st, ins = self.dq.pop(0)
            for t in ins[:-1]:
                self.a(t)
            self.a(ins[-1], tag=("st", st))
            n -= 1

    def issue_stage_now(self, st):
        while self.dq and self.dq[0][0] <= st:
            assert self.dma_avail(), (st, self.dq[0][0], self.consumed)
            self.issue_dma()

    def sync(self, ready=None, consumed=None, vm0=False):
        if ready is not None and ready < len(self.stages) and ready > self.ready:
            assert not any(s <= ready for s, _ in self.dq), f"stage {ready} DMA not issued yet"
            self.a.wait_tag(("st", ready))
            self.ready = ready
        if vm0:
            self.a.wait(vm=0)
        self.a.barrier()
        if consumed is not None:
            self.consumed = max(self.consumed, consumed)

    def alloc_frag(self):
        r = self.ring_base + 4 * (self.fcount % self.ring_n)
        self.fcount += 1
        return r

    def run(self, slots, fillers=(), dma_every=4, free=12, prefetched=0, tail_prefetch=None):
        a = self.a
        pf = self.pf
        fillers = list(fillers)
        allslots = list(slots) + list(tail_prefetch or [])
        n = len(slots)

        def read(i):
            s = allslots[i]
            if "reg" in s or s.get("rd") is None:
                return
            assert s["st"] <= self.ready, f"read of stage {s['st']} before ready ({self.ready}) slot {i}"
            s["reg"] = self.alloc_frag()
            for t in s["rd"](s["reg"]):
                a(t)

        for i in range(min(pf, len(allslots))):
            read(i)
        since_dma = 0
        for i in range(n):
            s = slots[i]
            while fillers and fillers[0][2] <= i:
                self._fill(fillers.pop(0))
            for ev in s.get("ev", ()):
                ev()
            a(s["mf"](s.get("reg")))
            if i % 2 == 1:
                regs = []
                for k in (i + 1, i + 2):
                    if k < n and "reg" in slots[k]:
                        regs += [("a", slots[k]["reg"] + q) for q in range(4)]
                a.wait_regs(regs)
            since_dma += 1
            did_vm = False
            if since_dma >= dma_every or (since_dma >= 2 and self.vq):
                if self.vq:
                    ins, tag = self.vq.pop(0)
                    for t in ins[:-1]:
                        a(t)
                    a(ins[-1], tag=tag)
                    did_vm = True
                    since_dma = max(0, since_dma - 2)
                elif self.dma_avail():
                    self.issue_dma()
                    did_vm = True
                    since_dma = 0
            if i + pf < len(allslots):
                read(i + pf)
            if did_vm:
                continue
            elig = [f for f in fillers if f[1] <= i]
            if not elig:
                continue
            quota = free
            acc = 0
            for f in elig:
                acc += cost(f[0]) if isinstance(f[0], str) else 0
                gaps = max(1, (f[2] - i) * (dma_every - 1) // dma_every)
                quota = max(quota, -(-acc // gaps))
            used = 0
            while fillers and fillers[0][1] <= i:
                c = cost(fillers[0][0]) if isinstance(fillers[0][0], str) else 0
                if used + c > quota and used > 0:
                    break
                self._fill(fillers.pop(0))
                used += c
        for f in fillers:
            self._fill(f)

    def _fill(self, f):
        if isinstance(f[0], str):
            self.a(f[0])
        else:
            f[0]()

    def flush_vq(self):
        while self.vq:
            ins, tag = self.vq.pop(0)
            for t in ins[:-1]:
                self.a(t)
            self.a(ins[-1], tag=tag)


def make_srd(a, n, ptr_lo, nbytes):
    a(f"s_mov_b32 s{n}, s{ptr_lo}")
    a(f"s_and_b32 s{n+1}, s{ptr_lo+1}, 0xffff")
    a(f"s_mov_b32 s{n+2}, {nbytes}")
    a(f"s_mov_b32 s{n+3}, 0x20000")


vLANE, vHI, vT0, vT1, vT2, vT3 = 1, 2, 3, 4, 5, 6
vXO = 7
vXA = 9
vM, vRS = 13, 14
vS = 15
XR = 64


def prologue_ids(a):
    a("s_cmp_ge_u32 s2, 256")
    a("s_cbranch_scc1 L_end")
    stamp(a, "start")
    a("s_load_dwordx16 s[64:79], s[0:1], 0")
    a("s_load_dwordx4 s[80:83], s[0:1], 64")
    a("s_load_dwordx2 s[84:85], s[0:1], 80")
    a(f"v_and_b32 v{vLANE}, 63, v0")
    a(f"v_lshrrev_b32 v{vT0}, 6, v0")
    a(f"v_readfirstlane_b32 s{sW}, v{vT0}")
    a(f"v_lshrrev_b32 v{vHI}, 5, v{vLANE}")
    a("s_and_b32 s3, s2, 7")
    a("s_lshr_b32 s4, s2, 3")
    a(f"s_and_b32 s{sRB}, s4, 7")
    a("s_and_b32 s5, s3, 1")
    a("s_lshl_b32 s5, s5, 3")
    a(f"s_add_u32 s{sRB}, s{sRB}, s5")
    a("s_lshr_b32 s4, s4, 3")
    a("s_lshr_b32 s3, s3, 1")
    a(f"s_mul_i32 s{sWBASE}, s{sW}, {REG}")
    a(f"s_lshl_b32 s5, s{sRB}, 2")
    a(f"s_add_u32 s5, s5, s{sW}")
    a(f"s_mul_i32 s{sXo0}, s5, {32*1152}")
    a(f"s_add_u32 s{sXo1}, s{sXo0}, {16*1152}")
    a(f"s_mul_i32 s{sOUT}, s5, {36*1024}")
    a(f"s_mov_b32 s{sLO}, 0x00003f80")
    a(f"s_mov_b32 s{sHI}, 0x3f800000")
    a(f"s_mov_b32 s{sONES}, 0x3f803f80")
    a(f"s_mov_b32 s{sMASK}, 0xffff0000")
    a(f"s_mov_b32 s{sL2E}, {LOG2E:#x}")
    a(f"s_mov_b32 s{sM2LN2}, {M2LN2:#x}")
    a(f"v_lshrrev_b32 v{vT0}, 3, v{vLANE}")
    a(f"v_mul_u32_u24 v{vT0}, 1152, v{vT0}")
    a(f"v_lshrrev_b32 v{vT1}, 4, v{vLANE}")
    a(f"v_and_b32 v{vT2}, 7, v{vLANE}")
    a(f"v_xor_b32 v{vT1}, v{vT1}, v{vT2}")
    if os.environ.get("NOSWZ"):
        a(f"v_mov_b32 v{vT1}, v{vT2}")
    a(f"v_lshl_add_u32 v{vXO}, v{vT1}, 4, v{vT0}")
    a(f"v_xor_b32 v{vT1}, 4, v{vT1}")
    a(f"v_lshl_add_u32 v{vXO+1}, v{vT1}, 4, v{vT0}")
    a(f"v_add_u32 v{vXO+1}, {8*1152}, v{vXO+1}")
    make_srd(a, S_X, 64, 2048 * 1152)
    stamp(a, "karg")


def prologue_x(a):
    for lam in range(9):
        for rg in range(4):
            a(f"s_add_u32 m0, s{sWBASE}, {(lam*4+rg)*1024 - 128*lam}")
            a(f"buffer_load_dwordx4 v{vXO+(rg&1)}, {srd(S_X)}, s{sXo0+(rg>>1)} offen offset:{128*lam} lds", tag=("x", lam))
    stamp(a, "xiss")
    make_srd(a, S_WS, 84, WS_SIZE)
    make_srd(a, S_DBG, 82, 256)
    a(f"v_and_b32 v{vT0}, 31, v{vLANE}")
    a(f"v_lshrrev_b32 v{vT1}, 3, v{vT0}")
    a(f"v_lshlrev_b32 v{vT1}, 10, v{vT1}")
    a(f"v_and_b32 v{vT2}, 7, v{vT0}")
    a(f"v_lshl_add_u32 v{vT1}, v{vT2}, 7, v{vT1}")
    a(f"v_add_u32 v{vT1}, s{sWBASE}, v{vT1}")
    a(f"v_bfe_u32 v{vT2}, v{vT0}, 1, 3")
    a(f"v_xor_b32 v{vT2}, v{vT2}, v{vHI}")
    for km in range(4):
        a(f"v_xor_b32 v{vT3}, {2*km}, v{vT2}")
        a(f"v_lshl_add_u32 v{vXA+km}, v{vT3}, 4, v{vT1}")


def tr_lanepart(a, dst, kind, tmp):
    hi_bytes, perm = kind
    a(f"v_bfe_u32 v{dst}, v{vLANE}, 2, 2")
    a(f"v_lshlrev_b32 v{dst}, 6, v{dst}")
    a(f"v_bfe_u32 v{tmp}, v{vLANE}, 4, 1")
    a(f"v_lshl_add_u32 v{dst}, v{tmp}, 5, v{dst}")
    if perm:
        a(f"v_and_b32 v{tmp}, 1, v{vLANE}")
        a(f"v_lshl_add_u32 v{dst}, v{tmp}, 4, v{dst}")
        a(f"v_bfe_u32 v{tmp}, v{vLANE}, 1, 1")
        a(f"v_lshl_add_u32 v{dst}, v{tmp}, 3, v{dst}")
    else:
        a(f"v_and_b32 v{tmp}, 3, v{vLANE}")
        a(f"v_lshl_add_u32 v{dst}, v{tmp}, 3, v{dst}")
    a(f"v_mul_u32_u24 v{tmp}, {hi_bytes}, v{vHI}")
    a(f"v_add_u32 v{dst}, v{dst}, v{tmp}")


def rne_bf16(a, reg):
    a(f"v_cvt_pk_bf16_f32 v{reg}, v{reg}, v{reg}")
    a(f"v_and_b32 v{reg}, s{sMASK}, v{reg}")


def half_sum(a, reg, tmp):
    a(f"v_mov_b32 v{tmp}, v{reg}")
    a(f"v_permlane32_swap_b32 v{reg}, v{tmp}")
    a(f"v_add_f32 v{reg}, v{reg}, v{tmp}")


def layernorm(a, eng, lam_events, lbl, tmpbase):
    for i in range(4):
        a(f"v_mov_b32 v{vS+i}, 0")
    def stats(lam):
        for k in range(4 * lam, 4 * lam + 4):
            for q in range(4):
                r = XR + 4 * k + q
                a(f"v_dot2c_f32_bf16 v{vS+(q&1)}, s{sONES}, v{r}")
                a(f"v_dot2c_f32_bf16 v{vS+2+(q&1)}, v{r}, v{r}")
    for lam in range(9):
        a.wait_tag(("x", lam))
        stamp(a, f"x{lam}")
        for km in range(4):
            a(f"ds_read_b128 {vr(XR+4*(4*lam+km))}, v{vXA+km} offset:{lam*4096}")
        if lam >= 1:
            stats(lam - 1)
            for ev in lam_events.get(lam - 1, ()):
                ev()
    stats(8)
    for ev in lam_events.get(8, ()):
        ev()
    stamp(a, "stats")
    a(f"v_add_f32 v{vS}, v{vS}, v{vS+1}")
    a(f"v_add_f32 v{vS+2}, v{vS+2}, v{vS+3}")
    half_sum(a, vS, vS + 1)
    half_sum(a, vS + 2, vS + 3)
    inv = 0x3AE38E39
    a(f"v_mul_f32 v{vS}, {inv:#x}, v{vS}")
    a(f"v_mul_f32 v{vS+2}, {inv:#x}, v{vS+2}")
    a(f"v_mov_b32 v{vM}, v{vS}")
    rne_bf16(a, vM)
    a(f"v_sub_f32 v{vS+1}, v{vS}, v{vM}")
    a(f"v_sub_f32 v{vM}, 0, v{vM}")
    a(f"v_mul_f32 v{vS+3}, v{vS}, v{vS}")
    a(f"v_sub_f32 v{vRS}, v{vS+2}, v{vS+3}")
    G = 8
    for base in range(0, 144, G):
        for q in range(G):
            a(f"v_dot2_f32_bf16 v{tmpbase+2*q}, v{XR+base+q}, s{sLO}, v{vM}")
            a(f"v_dot2_f32_bf16 v{tmpbase+2*q+1}, v{XR+base+q}, s{sHI}, v{vM}")
        for q in range(G):
            a(f"v_cvt_pk_bf16_f32 v{XR+base+q}, v{tmpbase+2*q}, v{tmpbase+2*q+1}")
    a(f"v_mul_f32 v{vS+2}, 0x41800000, v{vRS}")
    a(f"v_cmp_nge_f32 vcc, v{vS+2}, v{vS+3}")
    a(f"s_cbranch_vccz {lbl}")
    a(f"v_mov_b32 v{vS+2}, 0")
    a(f"v_mov_b32 v{vS+3}, 0")
    for r in range(144):
        a(f"v_dot2c_f32_bf16 v{vS+2+(r&1)}, v{XR+r}, v{XR+r}")
    a(f"v_add_f32 v{vS+2}, v{vS+2}, v{vS+3}")
    half_sum(a, vS + 2, vS + 3)
    a(f"v_mul_f32 v{vS+2}, {inv:#x}, v{vS+2}")
    a(f"v_mul_f32 v{vS+1}, v{vS+1}, v{vS+1}")
    a(f"v_sub_f32 v{vRS}, v{vS+2}, v{vS+1}")
    a.nop(4)
    a.label(lbl)
    a(f"v_max_f32 v{vRS}, 0, v{vRS}")
    rne_bf16(a, vRS)
    a(f"v_add_f32 v{vRS}, 0x3727c5ac, v{vRS}")
    rne_bf16(a, vRS)
    a(f"v_sqrt_f32 v{vRS}, v{vRS}")
    rne_bf16(a, vRS)
    a(f"v_rcp_f32 v{vRS}, v{vRS}")


def out_store_fillers(eng, acc_tiles, stage_regs, soff_const, lo, hi, mods=""):
    F = []
    for u in range(4):
        t, hf = u >> 1, u & 1
        for q in range(4):
            s = acc_tiles[t] + 8 * hf + 2 * q
            F.append((f"v_cvt_pk_bf16_f32 v{stage_regs+4*u+q}, v{s}, v{s+1}", lo, hi))
        def q_store(u=u):
            ins = []
            if u == 0:
                ins.append(f"s_add_u32 s{sT2}, s{sOUT}, {soff_const}")
            ins.append(f"buffer_store_dwordx4 {vr(stage_regs+4*u)}, v{vST}, {srd(S_WS)}, s{sT2} offen offset:{1024*u}{mods}")
            eng.vq.append((ins, "out"))
        F.append((q_store, lo, hi))
    return F


vST = 19
vD = 20
vB1 = 26
vBI = 30
vC = 31


def ffn_role(a):
    a("s_mul_i32 s3, s3, 3")
    a("s_add_u32 s3, s3, s4")
    a(f"s_sub_u32 s{sJ}, s3, 1")
    make_srd(a, S_WA, 74, 576 * 9216)
    make_srd(a, S_WB, 78, 4608 * 1152)
    make_srd(a, S_AUX, 76, 4608 * 2)
    a(f"s_mul_i32 s{sT}, s{sJ}, 768")
    a(f"v_lshlrev_b32 v{vT0}, 2, v0")
    a(f"v_min_u32 v{vT0}, 764, v{vT0}")
    a(f"buffer_load_dword v32, v{vT0}, {srd(S_AUX)}, s{sT} offen")
    a(f"v_lshlrev_b32 v33, 1, v{vT0}")
    prologue_x(a)
    a(f"v_lshlrev_b32 v{vT1}, 2, v{vHI}")
    a(f"v_bfe_u32 v{vT2}, v{vLANE}, 2, 2")
    a(f"v_add_u32 v{vT1}, v{vT1}, v{vT2}")
    a(f"v_bfe_u32 v{vT2}, v{vLANE}, 4, 1")
    a(f"v_lshlrev_b32 v{vT2}, 6, v{vT2}")
    a(f"v_and_b32 v{vT3}, 3, v{vLANE}")
    a(f"v_lshl_add_u32 v{vT2}, v{vT3}, 4, v{vT2}")
    a(f"v_mul_u32_u24 v{vD}, 9216, v{vT1}")
    a(f"v_add_u32 v{vD}, v{vD}, v{vT2}")
    a(f"v_add_u32 v{vD+1}, {8*9216-1024}, v{vD}")
    a(f"v_add_u32 v{vD+2}, {16*9216-2048}, v{vD}")
    a(f"v_mul_u32_u24 v{vD+3}, 1152, v{vT1}")
    a(f"v_add_u32 v{vD+3}, v{vD+3}, v{vT2}")
    a(f"v_add_u32 v{vD+4}, {8*1152-1024}, v{vD+3}")
    a(f"v_add_u32 v{vD+5}, {16*1152-2048}, v{vD+3}")
    a(f"s_mul_i32 s{sA}, s{sW}, {48*9216}")
    a(f"s_add_u32 s{sA}, s{sA}, s{sT}")
    a(f"s_mul_i32 s{sB}, s{sJ}, 384")
    a(f"s_mul_i32 s{sT2}, s{sW}, 48")
    a(f"s_add_u32 s{sB}, s{sB}, s{sT2}")
    a(f"s_mul_i32 s{sB}, s{sB}, 1152")
    a(f"s_mul_i32 s{sT2}, s{sJ}, {SLAB}")
    a(f"s_add_u32 s{sOUT}, s{sOUT}, s{sT2}")
    a(f"v_lshlrev_b32 v{vST}, 4, v{vLANE}")
    tr_lanepart(a, vB1, (1024, False), vT3)
    for i in range(1, 4):
        a(f"v_add_u32 v{vB1+i}, {REG*i}, v{vB1}")
    a(f"v_lshlrev_b32 v{vBI}, 4, v{vHI}")
    a(f"v_add_u32 v{vBI}, {SPARE}, v{vBI}")
    a(f"v_mov_b32 v{vC}, {LN2:#x}")

    eng = Engine(a, 144, 12, 6)
    for st in range(36):
        dma = []
        for b in range(6):
            gq, i = divmod(b, 3)
            ins = []
            if i == 0:
                ins.append(f"s_add_u32 m0, s{sWBASE}, {(st%6)*6144 + gq*3072}")
                if st < 18:
                    p, kc = divmod(st, 3)
                    ins.append(f"s_add_u32 s{sT}, s{sA}, {(kc*192+24*gq)*9216 + p*128}")
                else:
                    dp, kc = divmod(st - 18, 2)
                    ins.append(f"s_add_u32 s{sT}, s{sB}, {(kc*192+24*gq)*1152 + dp*128}")
            if st < 18:
                ins.append(f"buffer_load_dwordx4 v{vD+i}, {srd(S_WA)}, s{sT} offen offset:{1024*i} lds")
            else:
                ins.append(f"buffer_load_dwordx4 v{vD+3+i}, {srd(S_WB)}, s{sT} offen offset:{1024*i} lds")
            dma.append(ins)
        eng.add_stage(dma, st - 6)

    def bias_table():
        a(f"v_lshlrev_b32 v34, 16, v32")
        a(f"v_and_b32 v35, s{sMASK}, v32")
        a(f"v_mul_f32 v34, s{sL2E}, v34")
        a(f"v_mul_f32 v35, s{sL2E}, v35")
        a(f"v_add_u32 v33, {SPARE}, v33")
        a(f"ds_write_b64 v33, v[34:35]")
    ev = {1: [lambda: eng.issue_stage_now(0)], 2: [lambda: eng.issue_stage_now(1)], 4: [lambda: eng.issue_stage_now(2)],
          5: [lambda: eng.issue_stage_now(3)], 7: [lambda: eng.issue_stage_now(4)], 8: [bias_table]}
    layernorm(a, eng, ev, "L_ffn_var", 32)
    a(f"v_mul_f32 v{vRS}, s{sL2E}, v{vRS}")
    a.wait(lg=0)
    stamp(a, "ln")
    eng.sync(ready=0)
    stamp(a, "go")

    HA = [(208, 224), (64, 80)]
    ACT = 96
    STG = 192
    TMP = 32
    slots = []
    fill = []

    def add_slot(st, kl, t, acc, bop, first, g2):
        piece, kk = divmod(kl, 3)
        base = (st % 6) * 6144 + t * 256
        if not g2:
            offs = [base + kk * 2048 + eh * 512 for eh in range(2)]
        else:
            offs = [base + (2 * kk + eh) * 1024 for eh in range(2)]
        breg = (vB2 if g2 else vB1) + piece
        def rd(r):
            return [f"ds_read_b64_tr_b16 {ar(r+2*eh,2)}, v{breg} offset:{offs[eh]}" for eh in range(2)]
        def mf(r):
            return f"v_mfma_f32_32x32x16_bf16 {vr(acc,16)}, {ar(r)}, {bop}, {'0' if first else vr(acc,16)}"
        s = dict(st=st, rd=rd, mf=mf, ev=[])
        if kl == 6 and t == 0:
            s["ev"].append(lambda st=st: eng.sync(ready=st + 1, consumed=st - 1))
        slots.append(s)

    vB2 = 240
    def act_fillers(p, lo, hi):
        F = []
        for t in range(2):
            T = 2 * p + t
            acc = HA[p & 1][t]
            bias = TMP + 16 * 0
            for g in range(4):
                bb = TMP + 4 * (g & 1)
                e = TMP + 8 + 8 * (g & 1)
                F.append((f"ds_read_b128 {vr(bb)}, v{vBI} offset:{(32*T+8*g)*4}", lo, hi))
                x = [acc + 4 * g + q for q in range(4)]
                for q in range(4): F.append((f"v_fma_f32 v{x[q]}, v{x[q]}, v{vRS}, v{bb+q}", lo, hi))
                for q in range(4): F.append((f"v_exp_f32 v{e+q}, v{x[q]}", lo, hi))
                for q in range(4): F.append((f"v_add_f32 v{e+4+q}, 2.0, v{e+q}", lo, hi))
                for q in range(4): F.append((f"v_fma_f32 v{e+q}, v{e+q}, v{e+4+q}, 2.0", lo, hi))
                for q in range(4): F.append((f"v_rcp_f32 v{e+q}, v{e+q}", lo, hi))
                for q in range(4): F.append((f"v_fma_f32 v{e+q}, v{e+q}, s{sM2LN2}, v{vC}", lo, hi))
                for q in range(4): F.append((f"v_mul_f32 v{x[q]}, v{x[q]}, v{e+q}", lo, hi))
                for q in range(2): F.append((f"v_cvt_pk_bf16_f32 v{ACT+8*T+2*g+q}, v{x[2*q]}, v{x[2*q+1]}", lo, hi))
        G = []
        groups = [F[i:i + 31] for i in range(0, len(F), 31)]
        G.append(groups[0][0])
        for i, g in enumerate(groups):
            G += g[1:5]
            if i + 1 < len(groups): G.append(groups[i + 1][0])
            G += g[5:]
        return G

    for p in range(6):
        for kc in range(3):
            for kl in range(12):
                k = kc * 12 + kl
                for t in range(2):
                    bop = vr(XR + 4 * k) if p == 0 else ar(4 * k)
                    add_slot(3 * p + kc, kl, t, HA[p & 1][t], bop, k == 0, False)
        if p == 0:
            for r in range(144):
                fill.append((f"v_accvgpr_write_b32 a{r}, v{XR+r}", 0, 70))
        else:
            fill += act_fillers(p - 1, 72 * p + 2, 72 * p + 70)
    def mk_b2():
        tr_lanepart(a, vB2, (512, True), vT3)
        for i in range(1, 4):
            a(f"v_add_u32 v{vB2+i}, {REG*i}, v{vB2}")
    mk_b2()
    fill += act_fillers(5, 434, 432 + 38)
    for dp in range(9):
        for kc in range(2):
            for kl in range(12):
                k = kc * 12 + kl
                for t in range(2):
                    add_slot(18 + 2 * dp + kc, kl, t, HA[dp & 1][t], vr(ACT + 4 * k), k == 0, True)
        if dp >= 1:
            lo = 432 + 48 * dp
            fill += out_store_fillers(eng, HA[(dp - 1) & 1], STG, (dp - 1) * 4096, lo + 3, lo + 30)
    slots[432]["ev"].append(lambda: stamp(a, "g1"))
    eng.run(slots, fill, dma_every=3)
    stamp(a, "g2")
    eng.flush_vq()
    for f in out_store_fillers(eng, HA[0], STG, 8 * 4096, 0, 0):
        eng._fill(f)
        eng.flush_vq()
    if PROF:
        a.wait(vm=0)
    stamp(a, "end")
    stamp_flush(a, srd(S_WS), MAIN_ID)
    a("s_branch L_end")


def header(launches):
    L = [f"; @launch kernel={k} grid=({g},1,1) block=({b},1,1) lds={lds}" for k, g, b, lds in launches]
    L += ['.amdgcn_target "amdgcn-amd-amdhsa--gfx950"', ".text"]
    return L


def kd(name, vgpr, accum, sgpr=102):
    return [f".amdhsa_kernel {name}", f"  .amdhsa_next_free_vgpr {vgpr}", f"  .amdhsa_next_free_sgpr {sgpr}",
            f"  .amdhsa_accum_offset {accum}", "  .amdhsa_group_segment_fixed_size 0", "  .amdhsa_kernarg_size 88",
            "  .amdhsa_user_sgpr_count 2", "  .amdhsa_user_sgpr_kernarg_segment_ptr 1",
            "  .amdhsa_system_sgpr_workgroup_id_x 1", "  .amdhsa_float_denorm_mode_32 3", ".end_amdhsa_kernel"]


def build(path, with_attn=True):
    import copy
    a = Asm()
    name1 = "main_kernel"
    a.raw(f".globl {name1}"); a.raw(".p2align 8"); a.raw(f".type {name1},@function"); a.label(name1)
    prologue_ids(a)
    a("s_cmp_eq_u32 s4, 0")
    a("s_cbranch_scc1 L_attn")
    snap = (copy.deepcopy(a.vm), copy.deepcopy(a.lg), a.smem)
    ffn_role(a)
    a.label("L_attn")
    a.vm, a.lg, a.smem = snap
    a.nop(4)
    if with_attn:
        from attn import attn_role
        attn_role(a)
    a.label("L_end")
    a.raw("s_endpgm")
    from comb import comb_kernel
    b = Asm()
    name2 = "comb_kernel"
    b.raw(f".globl {name2}"); b.raw(".p2align 8"); b.raw(f".type {name2},@function"); b.label(name2)
    nv = comb_kernel(b)
    L = header([(name1, 256, 256, LDS_BYTES), (name2, 288, 256, 0)])
    L += a.lines + b.lines
    L += ['.section .rodata,"a"', ".p2align 6"] + kd(name1, 512, 256) + [".p2align 6"] + kd(name2, nv, (nv + 3) // 4 * 4)
    open(path, "w").write("\n".join(L) + "\n")
    print("instr stats", a.stats, "lines", len(L))


if __name__ == "__main__":
    build(sys.argv[1], with_attn=(len(sys.argv) < 3 or sys.argv[2] != "noattn"))
```

```python
from gen import *

RING, NRING, PF = 144, 6, 4
WP = 168
PHI_OFF, PHI_ROW = 0, 584
V_OFF, V_ROW = 20480, 328
KVT = SPARE
KVT_PAIR = 3280
WQ_ROW = 3456

vDA = 20
vDO = 22
vP = 23
vB = 26
vRSL = 30


def spin_block(a, lbl, back, off, target, tail):
    L = [f"{lbl}:", f"s_mov_b32 s58, 0", f"{lbl}_l:", "s_sleep 4",
         f"buffer_load_dword v{vT0}, off, {srd(S_DBG)}, s{off} sc1", "s_waitcnt vmcnt(0)", "s_nop 1",
         f"v_readfirstlane_b32 s59, v{vT0}", "s_add_u32 s58, s58, 1", "s_nop 3",
         f"s_cmp_ge_u32 s59, {target}", f"s_cbranch_scc1 {back}",
         "s_cmp_lt_u32 s58, 0x40000", f"s_cbranch_scc1 {lbl}_l", f"s_branch {back}"]
    tail += L


def poll_issue(a, off, reg):
    a(f"buffer_load_dword v{reg}, off, {srd(S_DBG)}, s{off} sc1")


def poll_check(a, reg, off, target, name, tail):
    a(f"v_readfirstlane_b32 s59, v{reg}")
    a(f"s_cmp_lt_u32 s59, {target}")
    a(f"s_cbranch_scc1 L_spin_{name}")
    a.label(f"L_back_{name}")
    spin_block(a, f"L_spin_{name}", f"L_back_{name}", off, target, tail)


def signal(a, off, vone, vsel):
    a(f"buffer_atomic_add v{vone}, v{vsel}, {srd(S_DBG)}, s{off} offen sc1")


def softmax_ops(p, E, M, dst, normalise_both, sreg=None):
    o = []
    mx, mn, sp, sn = M, M + 1, M + 2, M + 3
    o.append(f"v_max3_f32 v{mx}, v{p[0]}, v{p[1]}, v{p[2]}")
    o.append(f"v_min3_f32 v{mn}, v{p[0]}, v{p[1]}, v{p[2]}")
    for i in range(3, 17, 2):
        o.append(f"v_max3_f32 v{mx}, v{mx}, v{p[i]}, v{p[i+1]}")
        o.append(f"v_min3_f32 v{mn}, v{mn}, v{p[i]}, v{p[i+1]}")
    o.append(f"v_max_f32 v{mx}, v{mx}, v{p[17]}")
    o.append(f"v_min_f32 v{mn}, v{mn}, v{p[17]}")
    o.append(f"v_mul_f32 v{mx}, v{mx}, v{vRSL}")
    o.append(f"v_mul_f32 v{mn}, v{mn}, v{vRSL}")
    for i in range(18):
        o.append(f"v_fma_f32 v{E+i}, v{p[i]}, v{vRSL}, -v{mx}")
        o.append(f"v_fma_f32 v{p[i]}, -v{p[i]}, v{vRSL}, v{mn}")
    for i in range(18):
        o.append(f"v_exp_f32 v{E+i}, v{E+i}")
        o.append(f"v_exp_f32 v{p[i]}, v{p[i]}")
    o.append(f"v_add_f32 v{sp}, v{E}, v{E+1}")
    o.append(f"v_add_f32 v{sn}, v{p[0]}, v{p[1]}")
    for i in range(2, 18):
        o.append(f"v_add_f32 v{sp}, v{sp}, v{E+i}")
        o.append(f"v_add_f32 v{sn}, v{sn}, v{p[i]}")
    o.append(f"v_rcp_f32 v{sn}, v{sn}")
    if normalise_both:
        o.append(f"v_rcp_f32 v{sp}, v{sp}")
        o.append(f"v_mul_f32 v{sn}, v{sn}, v{vRS}")
        o.append(f"v_mul_f32 v{sp}, v{sp}, v{vRS}")
    else:
        o.append(f"v_mov_b32 v{sreg}, v{sp}")
        o.append(f"v_mul_f32 v{sn}, v{sn}, v{sp}")
    for i in range(18):
        o.append(f"v_mul_f32 v{p[i]}, v{p[i]}, v{sn}")
    if normalise_both:
        for i in range(18):
            o.append(f"v_mul_f32 v{E+i}, v{E+i}, v{sp}")
    for i in range(9):
        o.append(f"v_cvt_pk_bf16_f32 v{dst+i}, v{E+2*i}, v{E+2*i+1}")
    for i in range(9):
        o.append(f"v_cvt_pk_bf16_f32 v{dst+9+i}, v{p[2*i]}, v{p[2*i+1]}")
    return o


def attn_role(a):
    tail = []
    KORD = [2, 5, 8, 0, 3, 6, 1, 4, 7]
    XPERM[0] = KORD
    a(f"s_mov_b32 s{sJ}, s3")
    make_srd(a, S_WA, 66, 576 * WQ_ROW)
    make_srd(a, S_WB, 70, 576 * 1152)
    make_srd(a, S_AUX, 68, 32 * 648)
    a(f"s_mul_i32 s{sC2}, s{sJ}, 288")
    a(f"s_and_b32 s{sC2}, s{sC2}, 0xffffff80")
    if TOUCH:
        light_index(a, vT1, 16)
        a(f"v_lshrrev_b32 v{vT2}, 2, v{vT1}")
        a(f"v_lshrrev_b32 v{vT3}, 8, v{vT1}")
        a(f"v_lshl_add_u32 v{vT2}, v{vT3}, 7, v{vT2}")
        a(f"v_add_u32 v{vT2}, 128, v{vT2}")
        a(f"v_mul_u32_u24 v{vT2}, {WQ_ROW}, v{vT2}")
        a(f"v_and_b32 v{vT1}, 3, v{vT1}")
        a(f"v_lshl_add_u32 v{vT1}, v{vT1}, 7, v{vT2}")
        a("s_mov_b64 exec, 0xffff")
        a(f"buffer_load_dword a251, v{vT1}, {srd(S_WA)}, s{sC2} offen offset:1152")
        a("s_mov_b64 exec, -1")
    prologue_x(a)
    a(f"s_mul_i32 s{sA}, s{sW}, {16*WQ_ROW}")
    a(f"s_mul_i32 s{sT2}, s{sJ}, 288")
    a(f"s_add_u32 s{sA}, s{sA}, s{sT2}")
    a(f"s_mul_i32 s{sB}, s{sJ}, {144*1152}")
    a(f"s_lshl_b32 s{sT2}, s{sW}, 6")
    a(f"s_add_u32 s{sB}, s{sB}, s{sT2}")
    a(f"s_add_u32 s{sT2}, s{sJ}, 12")
    a(f"s_mul_i32 s{sT2}, s{sT2}, {SLAB}")
    a(f"s_add_u32 s{sOUT}, s{sOUT}, s{sT2}")
    a(f"s_lshl_b32 s{sC0}, s{sJ}, 2")
    a(f"s_add_u32 s{sC1}, s{sC0}, 16")
    a(f"v_lshlrev_b32 v{vST}, 4, v{vLANE}")
    a(f"v_lshrrev_b32 v{vT1}, 2, v{vLANE}")
    a(f"v_and_b32 v{vT2}, 3, v{vLANE}")
    a(f"v_lshlrev_b32 v{vT2}, 4, v{vT2}")
    a(f"v_mul_u32_u24 v{vDA}, {WQ_ROW}, v{vT1}")
    a(f"v_add_u32 v{vDA}, v{vDA}, v{vT2}")
    a(f"v_bfe_u32 v{vT3}, v{vLANE}, 1, 1")
    a(f"v_mul_u32_u24 v{vT3}, {1152-288}, v{vT3}")
    a(f"v_add_u32 v{vDA+1}, v{vDA}, v{vT3}")
    a(f"v_mul_u32_u24 v{vDO}, 1152, v{vT1}")
    a(f"v_add_u32 v{vDO}, v{vDO}, v{vT2}")
    tr_lanepart(a, vB, (512, False), vT3)
    for i in range(1, 4):
        a(f"v_add_u32 v{vB+i}, {REG*i}, v{vB}")

    eng = Engine(a, RING, NRING, PF)
    pos = {}

    def proj_stage(st, kc, off, tiles, after):
        dma = []
        for t, (col, vo) in enumerate(tiles):
            dma.append([f"s_add_u32 m0, s{sWBASE}, {off + 1024*t}",
                        f"s_add_u32 s{sT}, s{sA}, {KORD[kc]*64*WQ_ROW + col}",
                        f"buffer_load_dwordx4 v{vo}, {srd(S_WA)}, s{sT} offen lds"])
        n = eng.add_stage(dma, after)
        assert n == st
        pos[st] = off
    T1 = [(1152 + 64 * t, vDA) for t in range(4)] + [(1152 + 256, vDA + 1)]
    T2 = [(2304 + 32 + 64 * t, vDA) for t in range(4)]
    T3 = [(64 * t, vDA) for t in range(5)]
    for s in range(9):
        proj_stage(s, s, (s % 7) * 5120, T1, s - 7)
    for s in range(9):
        proj_stage(9 + s, s, 20480 + (s % 4) * 4096, T2, [4, 5, 6, 6][s] if s < 4 else 9 + s - 4)
    KVDONE = 17.5
    for s in range(9):
        off = 31744 if s in (0, 7) else ((s - 1) % 7) * 5120
        after = {0: 16, 1: KVDONE, 2: KVDONE, 3: KVDONE, 8: 19}.get(s, 18)
        proj_stage(18 + s, s, off, T3, after)
    for s in range(5):
        off = [1, 2, 3, 0, 1][s] * 9216
        dma = []
        for kk in range(9):
            dma.append([f"s_add_u32 m0, s{sWBASE}, {off + 1024*kk}",
                        f"s_add_u32 s{sT}, s{sB}, {kk*16*1152 + s*256}",
                        f"buffer_load_dwordx4 v{vDO}, {srd(S_WB)}, s{sT} offen lds"])
        eng.add_stage(dma, [22, 24, 25, 26, 27][s])
        pos[27 + s] = off

    PQ = [(P, 2 * P + i) for P in range(4) for i in range(3)] + [(4, k) for k in range(9)]

    def wphi_fillers():
        F = []
        W, A = 64, 70
        def q_loads():
            for i in range(6):
                ins = [f"s_mul_i32 s62, s{sJ}, {8*648}"] if i == 0 else ([f"s_add_u32 s62, s62, 4096"] if i == 4 else [])
                eng.vq.append((ins + [f"buffer_load_dword v{W+i}, v{A}, {srd(S_AUX)}, s62 offen offset:{1024*(i%4)}"], "wphi"))
        F.append((f"v_lshlrev_b32 v{A}, 2, v0", 11, 14))
        F.append((q_loads, 11, 14))
        o = ["v_mov_b32 v72, 0", "v_mov_b32 v73, 0",
             f"v_min_u32 v74, 44, v{vLANE}", "v_mul_u32_u24 v75, 52, v74", "v_lshrrev_b32 v75, 8, v75",
             f"v_mul_u32_u24 v75, {19*40-40}, v75", "v_lshl_add_u32 v75, v74, 3, v75", f"v_add_u32 v75, {SPARE}, v75",
             "ds_write_b64 v75, v[72:73]"]
        for i in range(6):
            t = 76 + i
            o += [f"v_add_u32 v74, {256*i}, v0", "v_mul_u32_u24 v75, 7282, v74", "v_lshrrev_b32 v75, 16, v75",
                  f"v_mul_u32_u24 v{t}, 3641, v75", f"v_lshrrev_b32 v{t}, 16, v{t}", f"v_mul_u32_u24 v{t}, 40, v{t}",
                  f"v_lshl_add_u32 v{t}, v75, 2, v{t}", f"v_lshl_add_u32 v{t}, v74, 2, v{t}", f"v_add_u32 v{t}, {SPARE+40}, v{t}"]
        F += [(t, 26, 76) for t in o]
        F += [(f"ds_write_b32 v{76+i}, v{W+i}", 60, 80) for i in range(6)]
        vR, vAa, vHr, T = 84, 85, 86, 87
        o = [f"v_bfe_u32 v{vR}, v{vLANE}, 2, 2", f"v_lshl_add_u32 v{vR}, v{vHI}, 2, v{vR}",
             f"v_bfe_u32 v{vAa}, v{vLANE}, 4, 1", f"v_bfe_u32 v{T}, v{vLANE}, 1, 1", f"v_lshl_add_u32 v{vAa}, v{vAa}, 1, v{T}",
             f"v_and_b32 v{vHr}, 1, v{vLANE}",
             f"v_mul_u32_u24 v{T}, 18, v{vHr}", f"v_sub_u32 v88, v{vR}, v{T}",
             f"v_mul_u32_u24 v89, 760, v{vHr}", f"v_lshl_add_u32 v89, v{vAa}, 3, v89", f"v_add_u32 v89, {SPARE+40}, v89",
             f"v_lshl_add_u32 v{T}, v{vAa}, 1, v{vHr}", f"v_mul_u32_u24 v90, 18, v{T}", f"v_sub_u32 v90, v{vR}, v90",
             f"v_mul_u32_u24 v91, 760, v{T}", f"v_add_u32 v91, {SPARE+40+32}, v91"]
        F += [(t, 60, 90) for t in o]
        n = 0
        for f, (tile, k) in enumerate(PQ):
            for eh in range(2):
                t = 92 + (n % 4); n += 1
                c = 16 * k + 8 * eh - (36 * tile if tile < 4 else 0)
                kb, ab = (88, 89) if tile < 4 else (90, 91)
                o = [f"v_add_u32 v{t}, {c}, v{kb}" if c >= 0 else f"v_subrev_u32 v{t}, {-c}, v{kb}",
                     f"v_med3_i32 v{t}, v{t}, -1, 18", f"v_mad_i32_i24 v{t}, v{t}, 40, v{ab}",
                     f"ds_read_b64_tr_b16 {ar(WP+4*f+2*eh,2)}, v{t} offset:{1520*tile if tile < 4 else 0}"]
                F += [(x, 91, 176) for x in o]
        return F

    vTI, vTA = 23, 24
    a(f"s_mul_i32 s{sC3}, s{sJ}, {144*1152}")
    def touch_qkv(which, dst):
        return [f"s_add_u32 s62, s{sC2}, {which*1152}",
                f"buffer_load_dword a{dst}, v{vTA}, {srd(S_WA)}, s62 offen"]
    if TOUCH:
        touch_index(a, vTI)
        a(f"v_lshrrev_b32 v{vTA}, 2, v{vTI}")
        a(f"v_add_u32 v{vT3}, 64, v{vTA}")
        a(f"v_cmp_gt_u32 vcc, 128, v{vTA}")
        a(f"v_cndmask_b32 v{vTA}, v{vT3}, v{vTA}, vcc")
        a(f"v_mul_u32_u24 v{vTA}, {WQ_ROW}, v{vTA}")
        a(f"v_and_b32 v{vT3}, 3, v{vTI}")
        a(f"v_lshl_add_u32 v{vTA}, v{vT3}, 7, v{vTA}")
        a(f"v_lshlrev_b32 v{vTI}, 7, v{vTI}")
        a(f"v_min_u32 v{vTI}, {144*1152-128}, v{vTI}")

    ev = {}
    def t1():
        for t in touch_qkv(1, 255): a(t)
    layernorm(a, eng, ev, "L_att_var", 32, {10: t1} if TOUCH else {})
    a(f"v_mul_f32 v{vRSL}, s{sL2E}, v{vRS}")
    a.wait(lg=0)
    stamp(a, "ln")
    eng.sync(ready=0)
    stamp(a, "go")

    def proj_slots(st0, accs, xv):
        S = []
        nt = len(accs)
        for s in range(9):
            st = st0 + s
            for kl in range(4):
                k = 4 * s + kl
                for t in range(nt):
                    off = pos[st] + 1024 * t
                    def rd(r, off=off, kl=kl):
                        return [f"ds_read_b64_tr_b16 {ar(r+2*eh,2)}, v{vB+kl} offset:{off+256*eh}" for eh in range(2)]
                    def mf(r, t=t, k=k):
                        bop = vr(XR + 4 * k) if xv else ar(4 * k)
                        return f"v_mfma_f32_32x32x16_bf16 {vr(accs[t],16)}, {ar(r)}, {bop}, {'0' if k == 0 else vr(accs[t],16)}"
                    d = dict(st=st, rd=rd, mf=mf, ev=[])
                    if kl == 2 and t == 0:
                        d["ev"].append(lambda st=st: eng.sync(ready=(None if st in (17, 26) else st + 1), consumed=st - 1))
                    S.append(d)
        return S

    AC1 = [32, 48, 208, 224, 240]
    AC2 = [64, 80, 96, 112]
    KP = 128
    E = 168
    M = 186
    PH = 190

    def pack_ops(n):
        return [f"v_cvt_pk_bf16_f32 v{KP+i}, v{AC1[i//8]+2*(i%8)}, v{AC1[i//8]+2*(i%8)+1}" for i in range(n)]

    def feat_slots():
        S = []
        order = list(range(12, 21)) + list(range(12))
        seen = set()
        for f in order:
            tile, k = PQ[f]
            first = tile not in seen
            seen.add(tile)
            def mf(r, f=f, tile=tile, k=k, first=first):
                return f"v_mfma_f32_32x32x16_bf16 {vr(AC1[tile],16)}, {ar(WP+4*f)}, {vr(KP+4*k)}, {'0' if first else vr(AC1[tile],16)}"
            S.append(dict(st=-1, rd=None, mf=mf, ev=[]))
        return S

    def pregs(P):
        return [AC1[P] + i for i in range(16)] + [AC1[4] + 4 * P, AC1[4] + 4 * P + 1]

    S1 = proj_slots(0, AC1, True)
    S2 = proj_slots(9, AC2, False)
    S3 = proj_slots(18, AC1, False)
    fill = [(f"v_accvgpr_write_b32 a{r}, v{XR+r}", 0, 10 if r < 12 else 25 if r < 40 else 60) for r in range(144)]
    fill = sorted(fill + wphi_fillers(), key=lambda f: f[2])
    if TOUCH:
        S1[40]["ev"].append(lambda: eng.vq.append((touch_qkv(2, 253), "touch")))
        S1[100]["ev"].append(lambda: eng.vq.append((touch_qkv(0, 252), "touch")))
        S1[160]["ev"].append(lambda: eng.vq.append(([f"buffer_load_dword a254, v{vTI}, {srd(S_WB)}, s{sC3} offen"], "touch")))
    eng.run(S1, fill, dma_every=3, tail_prefetch=S2[:PF])
    stamp(a, "p1")
    NPK = 14
    FS = feat_slots()
    S2x = S2[:NPK] + FS + S2[NPK:]
    fill = [(t, 2, NPK) for t in pack_ops(40)]
    a(f"v_and_b32 v{vT0}, 31, v{vLANE}")
    a(f"v_mul_u32_u24 v{vP}, {PHI_ROW}, v{vT0}")
    a(f"v_mul_u32_u24 v{vT1}, 72, v{vHI}")
    a(f"v_add3_u32 v{vP}, v{vP}, v{vT1}, s{sWBASE}")
    a(f"v_mul_u32_u24 v{vP+1}, {V_ROW}, v{vT0}")
    a(f"v_add_u32 v{vP+1}, s{sWBASE}, v{vP+1}")
    a(f"v_mul_u32_u24 v{vT1}, 12, v{vHI}")
    a(f"v_add_u32 v{vP+2}, v{vP+1}, v{vT1}")
    a(f"v_lshl_add_u32 v{vP+1}, v{vHI}, 3, v{vP+1}")
    lo = NPK + 9 + 3 + 2
    hi = len(S2x)
    for P in range(4):
        e0 = lo + 3 * P
        for t in softmax_ops(pregs(P), E, M, PH, True):
            fill.append((t, e0, hi))
        for i in range(9):
            fill.append((f"ds_write_b64 v{vP}, {vr(PH+2*i,2)} offset:{PHI_OFF+144*P+8*i}", e0, hi))
    eng.run(S2x, fill, dma_every=3)
    stamp(a, "p2")
    eng.issue_stage_now(18)
    eng.sync(consumed=17)
    def v_write(reg, c0):
        o0 = (c0 // 18) * 40 + (c0 % 18) * 2
        o1 = ((c0 + 4) // 18) * 40 + ((c0 + 4) % 18) * 2
        assert o1 - o0 in (8, 12)
        a(f"ds_write_b32 v{vP+1 if o1-o0 == 8 else vP+2}, v{reg} offset:{V_OFF+o0}")
    for i in range(4):
        v_write(KP + 36 + i, 8 * (i >> 1) + 2 * (i & 1))
    for t in range(4):
        for q in range(8):
            s = AC2[t] + 2 * q
            a(f"v_cvt_pk_bf16_f32 v{s}, v{s}, v{s+1}")
        for q in range(8):
            v_write(AC2[t] + 2 * q, 16 + 32 * t + 8 * (q >> 1) + 2 * (q & 1))
    a(f"v_mul_u32_u24 v{vT1}, {160-8}, v{vHI}")
    a(f"v_add_u32 v{vT1}, v{vT1}, v{vP+1}")
    for h in range(4):
        a(f"ds_write_b32 v{vT1}, v{vM} offset:{V_OFF+40*h+36}")
    a(f"v_lshrrev_b32 v{vT0}, 2, v{vLANE}")
    a(f"v_and_b32 v{vT1}, 3, v{vLANE}")
    a(f"v_lshlrev_b32 v{vT1}, 3, v{vT1}")
    a(f"s_mul_i32 s60, s{sW}, 144")
    a(f"s_mul_i32 s61, s{sW}, 80")
    a(f"v_mul_u32_u24 v{vP}, {PHI_ROW}, v{vT0}")
    a(f"v_add3_u32 v{vP}, v{vP}, v{vT1}, s60")
    a(f"v_mul_u32_u24 v{vP+1}, {V_ROW}, v{vT0}")
    a(f"v_add3_u32 v{vP+1}, v{vP+1}, v{vT1}, s61")
    a.wait(lg=0)
    a.barrier()
    KA, KB, KD = 32, 80, 144
    for ks in range(4):
        if ks:
            a(f"v_add_u32 v{vP}, {REG}, v{vP}")
            a(f"v_add_u32 v{vP+1}, {REG}, v{vP+1}")
        base = 32 + (ks & 1) * 48
        for hh in range(2):
            for ft in range(3):
                r = base + (hh * 5 + ft) * 4
                for eh in range(2):
                    a(f"ds_read_b64_tr_b16 {vr(r+2*eh,2)}, v{vP} offset:{PHI_OFF+72*hh+32*ft+16*eh*PHI_ROW}")
            for dt in range(2):
                r = base + (hh * 5 + 3 + dt) * 4
                for eh in range(2):
                    a(f"ds_read_b64_tr_b16 {vr(r+2*eh,2)}, v{vP+1} offset:{V_OFF+40*hh+32*dt+16*eh*V_ROW}")
        if ks:
            kv_mfmas(a, 32 + ((ks - 1) & 1) * 48, KD, ks - 1)
    kv_mfmas(a, 32 + 48, KD, 3)
    a.wait(lg=0)
    eng.sync(ready=18, consumed=KVDONE)
    eng.issue_stage_now(19)
    a(f"v_and_b32 v{vT0}, 15, v{vLANE}")
    a(f"v_lshrrev_b32 v{vT1}, 4, v{vLANE}")
    a(f"v_mul_u32_u24 v{vP}, 144, v{vT0}")
    a(f"v_lshl_add_u32 v{vP}, v{vT1}, 4, v{vP}")
    a(f"v_mov_b32 v{vT2}, 0x7f000000")
    a(f"v_cmp_gt_u32 vcc, 4, v{vT0}")
    a(f"v_cndmask_b32 v{vP+1}, v{vT2}, v{vP}, vcc")
    a(f"v_cmp_eq_u32 vcc, 0, v{vT1}")
    a(f"v_cndmask_b32 v{vP+2}, v{vT2}, v{vP}, vcc")
    a(f"v_cndmask_b32 v{vT3}, v{vT2}, v{vP+1}, vcc")
    a(f"s_lshl_b32 s60, s{sJ}, 4")
    a(f"s_add_u32 s60, s60, s{sRB}")
    a(f"s_mul_i32 s60, s60, 23040")
    a(f"s_mul_i32 s61, s{sW}, 5760")
    a(f"s_add_u32 s60, s60, s61")
    a(f"s_add_u32 s60, s60, {KVP_OFF}")
    a(f"s_add_u32 s61, s60, 2880")
    for hh in range(2):
        for ft in range(3):
            for dt in range(2):
                vo = {(0, 0): vP, (0, 1): vP + 1, (1, 0): vP + 2, (1, 1): vT3}[(int(ft == 2), dt)]
                a(f"buffer_store_dwordx4 {vr(KD+(hh*6+ft*2+dt)*4)}, v{vo}, {srd(S_WS)}, s{60+hh} offen offset:{dt*2304+ft*64} sc1", tag="kvp")
    stamp(a, "kv")
    vONE, vSEL, vPOLL = 23, 24, 25
    a(f"v_mov_b32 v{vT2}, 0x7f000000")
    a(f"v_cmp_eq_u32 vcc, 0, v0")
    a(f"v_mov_b32 v{vONE}, 1")
    a(f"v_cndmask_b32 v{vSEL}, v{vT2}, v0, vcc")
    RD = 64
    vRA, vRB = 100, 101
    a(f"v_min_u32 v{vT0}, 44, v{vLANE}")
    a(f"s_mul_i32 s60, s{sW}, 45")
    a(f"v_add_u32 v{vT0}, s60, v{vT0}")
    a(f"v_lshlrev_b32 v{vRA}, 3, v{vT0}")
    a(f"s_mov_b32 s61, 3641")
    a(f"v_mul_u32_u24 v{vT1}, s61, v{vT0}")
    a(f"v_lshrrev_b32 v{vT1}, 16, v{vT1}")
    a(f"v_lshlrev_b32 v{vRB}, 2, v{vT0}")
    a(f"v_lshl_add_u32 v{vRB}, v{vT1}, 3, v{vRB}")
    a(f"s_mul_i32 s{sC2}, s{sJ}, {16*23040}")
    a(f"s_mul_i32 s61, s{sRB}, 1440")
    a(f"s_add_u32 s{sC2}, s{sC2}, s61")
    a(f"s_add_u32 s{sC2}, s{sC2}, {KVP_OFF}")
    a(f"s_mul_i32 s{sC3}, s{sJ}, 12800")
    a(f"s_add_u32 s{sC3}, s{sC3}, {KVG_OFF}")

    def ev_sig1():
        signal(a, sC0, vONE, vSEL)
    def replace_sync(slot, st, post):
        slot["ev"] = [lambda: eng.sync(ready=st + 1, consumed=st - 1, vm0=True), post]
    replace_sync(S3[30], 19, ev_sig1)
    S3[70]["ev"].append(lambda: poll_issue(a, sC0, vPOLL))
    def ev_hop1():
        poll_check(a, vPOLL, sC0, 16, "h1", tail)
        for r in range(16):
            eng.vq.append(([f"s_add_u32 s62, s{sC2}, {23040*r}",
                            f"buffer_load_dwordx2 {vr(RD+2*r,2)}, v{vRA}, {srd(S_WS)}, s62 offen sc1"], "sl"))
    S3[92]["ev"].append(ev_hop1)
    fill = []
    for r in range(1, 16):
        fill.append((f"v_add_f32 v{RD}, v{RD}, v{RD+2*r}", 150, 164))
        fill.append((f"v_add_f32 v{RD+1}, v{RD+1}, v{RD+2*r+1}", 150, 164))
    fill.append((f"v_cvt_pk_bf16_f32 v{RD}, v{RD}, v{RD+1}", 150, 164))
    def q_kvg():
        eng.vq.append(([f"s_mul_i32 s62, s{sRB}, 800", f"s_add_u32 s62, s62, s{sC3}",
                        f"buffer_store_dword v{RD}, v{vRB}, {srd(S_WS)}, s62 offen sc1"], "kvg"))
    fill.append((q_kvg, 150, 164))
    eng.run(S3, fill, dma_every=2)
    eng.flush_vq()
    stamp(a, "p3")
    for t in pack_ops(36):
        a(t)
    eng.sync(consumed=26, vm0=True)
    signal(a, sC1, vONE, vSEL)
    eng.run(feat_slots(), [], dma_every=2)
    FQ = 64
    SS = 190
    KL = 144
    for P in range(4):
        a(f"v_mov_b32 v{FQ+20*P+18}, 0")
        a(f"v_mov_b32 v{FQ+20*P+19}, 0")
    a(f"v_min_u32 v{vT0}, 49, v{vLANE}")
    a(f"s_mul_i32 s60, s{sW}, 3200")
    a(f"s_add_u32 s62, s60, s{sC3}")
    a(f"v_lshlrev_b32 v{vT1}, 4, v{vT0}")
    a(f"s_mul_i32 s60, s{sW}, {KVT_PAIR}")
    a(f"s_add_u32 s60, s60, {KVT}")
    a(f"v_add_u32 v{vT2}, s60, v{vT1}")
    a(f"v_mul_u32_u24 v{vT3}, 52, v{vT0}")
    a(f"v_lshrrev_b32 v{vT3}, 8, v{vT3}")
    a(f"v_mul_u32_u24 v{vT3}, 5, v{vT3}")
    a(f"v_sub_u32 v{vT3}, v{vT0}, v{vT3}")
    a(f"v_cmp_ne_u32 s[56:57], 4, v{vT3}")
    a(f"v_mov_b32 v194, v{vT1}")
    a(f"v_mov_b32 v195, v{vT2}")
    for P in range(4):
        for t in softmax_ops(pregs(P), E, M, FQ + 20 * P, False, SS + P):
            a(t)
        eng.issue_dma(5)
        if P == 0:
            poll_issue(a, sC1, vPOLL)
        elif P == 1:
            poll_check(a, vPOLL, sC1, 16, "h2", tail)
            for i in range(4):
                a(f"buffer_load_dwordx4 {vr(KL+4*i)}, v194, {srd(S_WS)}, s62 offen offset:{800*i} sc1")
        elif P == 2:
            for i in range(4):
                a(f"v_cndmask_b32 v{KL+4*i+2}, 0, v{KL+4*i+2}, s[56:57]")
                a(f"v_cndmask_b32 v{KL+4*i+3}, 0, v{KL+4*i+3}, s[56:57]")
                a(f"ds_write_b128 v195, {vr(KL+4*i)} offset:{800*i}")
            for i in range(4):
                a(f"v_mov_b32 v{KL+16+i}, 0")
            a(f"v_min_u32 v{vT0}, 4, v{vLANE}")
            a(f"v_lshlrev_b32 v{vT0}, 4, v{vT0}")
            a(f"v_add_u32 v{vT0}, s60, v{vT0}")
            a(f"ds_write_b128 v{vT0}, {vr(KL+16)} offset:3200")
    stamp(a, "smq")
    vI = 160
    a(f"v_bfe_u32 v{vT0}, v{vLANE}, 2, 1")
    a(f"v_bfe_u32 v{vT1}, v{vLANE}, 3, 2")
    a(f"v_and_b32 v{vT2}, 3, v{vLANE}")
    a(f"v_cmp_eq_u32 vcc, v{vT0}, v{vHI}")
    a(f"v_mul_u32_u24 v{vI}, 1600, v{vT0}")
    a(f"v_mul_u32_u24 v{vT3}, 80, v{vT2}")
    a(f"v_add_u32 v{vI}, v{vI}, v{vT3}")
    a(f"v_add_u32 v{vI}, {KVT}, v{vI}")
    a(f"v_mul_u32_u24 v{vT3}, 320, v{vT1}")
    a(f"v_add_u32 v{vI+1}, v{vI}, v{vT3}")
    a(f"v_mov_b32 v{vI+6}, {KVT+3200}")
    a(f"v_cndmask_b32 v{vI+1}, v{vI+6}, v{vI+1}, vcc")
    a(f"v_add_u32 v{vI}, 1280, v{vI}")
    a(f"v_cndmask_b32 v{vI}, v{vI+6}, v{vI}, vcc")
    for P in range(4):
        a(f"v_cmp_eq_u32 vcc, {P}, v{vT1}")
        a(f"v_cndmask_b32 v{vI+2+P}, v{vI+6}, v{vI}, vcc")
    a.wait(lg=0)
    eng.sync(ready=27)
    NS = []
    for tile_kind in (1, 0):
        for P in range(4):
            for k in range(5):
                acc = AC1[4] if tile_kind else AC1[P]
                first = (P == 0 and k == 0) if tile_kind else k == 0
                ad = vI + 2 + P if tile_kind else vI + 1
                def rd(r, ad=ad, P=P, k=k):
                    return [f"ds_read_b128 {ar(r)}, v{ad} offset:{KVT_PAIR*P+16*k}"]
                def mf(r, acc=acc, first=first, P=P, k=k):
                    return f"v_mfma_f32_32x32x16_bf16 {vr(acc,16)}, {ar(r)}, {vr(FQ+20*P+4*k)}, {'0' if first else vr(acc,16)}"
                NS.append(dict(st=-1, rd=rd, mf=mf, ev=[]))
    vW = 168
    tr_lanepart(a, vW, (18 * 64, True), vT3)
    a(f"v_bfe_u32 v{vT3}, v{vLANE}, 3, 1")
    a(f"v_mul_u32_u24 v{vT3}, {18*64}, v{vT3}")
    a(f"v_add_u32 v{vW+4}, v{vW}, v{vT3}")
    for i in range(1, 4):
        a(f"v_add_u32 v{vW+i}, {REG*i}, v{vW}")
        a(f"v_add_u32 v{vW+4+i}, {REG*i}, v{vW+4}")
    OP = 176
    OPR = [176 + i for i in range(32)] + [144 + i for i in range(4)]
    fill = []
    for P in range(4):
        L = AC1[4] + 4 * P
        e0 = 22
        fill.append((f"v_fmac_f32 v{L+2}, 0x358637bd, v{SS+P}", e0, 40))
        fill.append((f"v_rcp_f32 v{L+2}, v{L+2}", e0, 40))
    eng.run(NS, fill, dma_every=2)
    SV = [AC1[4] + 4 * P + 2 for P in range(4)]
    for P in range(4):
        p = pregs(P)
        for i in range(18):
            a(f"v_mul_f32 v{p[i]}, v{p[i]}, v{SV[P]}")
        for i in range(9):
            a(f"v_cvt_pk_bf16_f32 v{OPR[9*P+i]}, v{p[2*i]}, v{p[2*i+1]}")
    stamp(a, "o")
    WA = [(64, 80), (96, 112)]
    STG = 128
    WS_ = []
    fill = []
    for dp in range(9):
        st = 27 + dp // 2
        for k in range(9):
            for t in range(2):
                piece = (2 * dp + t) % 4
                acc = WA[dp & 1][t]
                def rd(r, st=st, piece=piece, k=k):
                    o = []
                    for eh in range(2):
                        n0 = 8 * k + 4 * eh
                        strad = n0 in (16, 52)
                        o.append(f"ds_read_b64_tr_b16 {ar(r+2*eh,2)}, v{vW+(4 if strad else 0)+piece} offset:{pos[st]+(n0+18*(n0//18))*64}")
                    return o
                def mf(r, acc=acc, k=k):
                    return f"v_mfma_f32_32x32x16_bf16 {vr(acc,16)}, {ar(r)}, {vr(OPR[4*k])}, {'0' if k == 0 else vr(acc,16)}"
                d = dict(st=st, rd=rd, mf=mf, ev=[])
                if dp % 2 == 1 and k == 0 and t == 0:
                    d["ev"].append(lambda st=st: eng.sync(ready=st + 1, consumed=st - 1))
                WS_.append(d)
        if dp >= 1:
            lo = 18 * dp
            fill += out_store_fillers(eng, WA[(dp - 1) & 1], STG + 0 * (dp & 1), (dp - 1) * 4096, lo + 3, lo + 12)
    eng.run(WS_, fill, dma_every=2)
    stamp(a, "g2")
    eng.flush_vq()
    for f in out_store_fillers(eng, WA[0], STG, 8 * 4096, 0, 0):
        eng._fill(f)
        eng.flush_vq()
    if PROF:
        a.wait(vm=0)
    stamp(a, "end")
    stamp_flush(a, srd(S_WS), MAIN_ID)
    a("s_branch L_end")
    for t in tail:
        a.raw(t)


def kv_mfmas(a, base, KD, ks):
    for hh in range(2):
        for ft in range(3):
            for dt in range(2):
                d = KD + (hh * 6 + ft * 2 + dt) * 4
                a(f"v_mfma_f32_16x16x32_bf16 {vr(d)}, {vr(base+(hh*5+ft)*4)}, {vr(base+(hh*5+3+dt)*4)}, {'0' if ks == 0 else vr(d)}")
```

```python
import sys, math
from emit import Asm, parse, TRANS

KN = "recurrent_scan__linear_kernel_hedgehog__dense_activation_mish__prompt"
LOG2E = 0x3FB8AA3B
LN2 = 0x3F317218
M2LN2 = 0xBFB17218
SLAB = 2048 * 576 * 2
KVP_OFF = 40 << 20
KVG_OFF = 44 << 20
WS_SIZE = 48 << 20
REG = 36864
SPARE = 4 * REG
LDS_BYTES = 163840

S_X, S_WA, S_WB, S_WS, S_AUX, S_DBG = 8, 12, 16, 20, 24, 28
sW, sRB, sJ, sWBASE = 32, 33, 34, 35
sXo0, sXo1 = 36, 37
sA, sB, sOUT, sT, sT2 = 38, 39, 40, 41, 42
sLO, sHI, sONES, sMASK, sL2E, sM2LN2 = 44, 45, 46, 47, 48, 49
sC0, sC1, sC2, sC3 = 50, 51, 52, 53


import os
PROF = int(os.environ.get("PROF", "0"))
PROF_OFF = 46 << 20
CODEPF = int(os.environ.get("CODEPF", "1"))
TOUCH = int(os.environ.get("TOUCH", "1"))
XAHEAD = int(os.environ.get("XAHEAD", "5"))
NST = 7


STAMPS = os.environ.get("STAMPS", "start,stats,ln,go,g1,g2,end").split(",")


def stamp(a, name):
    if PROF and (isinstance(name, int) or name in STAMPS):
        i = name if isinstance(name, int) else STAMPS.index(name)
        a(f"s_memrealtime s[{86+2*i}:{87+2*i}]")
        a.wait(lg=0)


def stamp_flush(a, wsrd, idreg_expr, vt=3):
    if not PROF:
        return
    for t in idreg_expr:
        a(t)
    for i in range(NST):
        a(f"v_mov_b32 v{vt}, s{86+2*i}")
        a(f"v_mov_b32 v{vt+1}, 0")
        a(f"buffer_store_dword v{vt}, v{vt+1}, {wsrd}, s{sT} offen offset:{4*i}")


MAIN_ID = [f"s_lshl_b32 s{sT}, s2, 2", f"s_add_u32 s{sT}, s{sT}, s{sW}", f"s_lshl_b32 s{sT}, s{sT}, 5", f"s_add_u32 s{sT}, s{sT}, {PROF_OFF}"]


def srd(n):
    return f"s[{n}:{n+3}]"


def vr(b, n=4):
    return f"v[{b}:{b+n-1}]"


def ar(b, n=4):
    return f"a[{b}:{b+n-1}]"


def cost(text):
    op = text.split()[0]
    if op in TRANS or op.startswith("v_permlane"):
        return 8
    if op.startswith("s_"):
        return 0
    return 4


class Stage:
    def __init__(self, dma, after):
        self.dma = dma
        self.after = after


class Engine:
    def __init__(self, a, ring_base, ring_n, pf):
        self.a = a
        self.ring_base, self.ring_n, self.pf = ring_base, ring_n, pf
        self.stages = []
        self.dq = []
        self.consumed = -1
        self.ready = -1
        self.fcount = 0
        self.vq = []
        self.pending_reads = []

    def add_stage(self, dma, after):
        self.stages.append(Stage(dma, after))
        n = len(self.stages) - 1
        for d in dma:
            self.dq.append((n, d))
        return n

    def dma_avail(self):
        return bool(self.dq) and self.stages[self.dq[0][0]].after <= self.consumed

    def issue_dma(self, n=1):
        while n > 0 and self.dma_avail():
            st, ins = self.dq.pop(0)
            for t in ins[:-1]:
                self.a(t)
            self.a(ins[-1], tag=("st", st))
            n -= 1

    def issue_stage_now(self, st):
        while self.dq and self.dq[0][0] <= st:
            assert self.dma_avail(), (st, self.dq[0][0], self.consumed)
            self.issue_dma()

    def sync(self, ready=None, consumed=None, vm0=False):
        if ready is not None and ready < len(self.stages) and ready > self.ready:
            assert not any(s <= ready for s, _ in self.dq), f"stage {ready} DMA not issued yet"
            self.a.wait_tag(("st", ready))
            self.ready = ready
        if vm0:
            self.a.wait(vm=0)
        self.a.barrier()
        if consumed is not None:
            self.consumed = max(self.consumed, consumed)

    def alloc_frag(self):
        r = self.ring_base + 4 * (self.fcount % self.ring_n)
        self.fcount += 1
        return r

    def run(self, slots, fillers=(), dma_every=4, free=12, prefetched=0, tail_prefetch=None):
        a = self.a
        pf = self.pf
        fillers = list(fillers)
        allslots = list(slots) + list(tail_prefetch or [])
        n = len(slots)

        def read(i):
            s = allslots[i]
            if "reg" in s or s.get("rd") is None:
                return
            assert s["st"] <= self.ready, f"read of stage {s['st']} before ready ({self.ready}) slot {i}"
            s["reg"] = self.alloc_frag()
            for t in s["rd"](s["reg"]):
                a(t)

        for i in range(min(pf, len(allslots))):
            read(i)
        since_dma = 0
        for i in range(n):
            s = slots[i]
            while fillers and fillers[0][2] <= i:
                self._fill(fillers.pop(0))
            for ev in s.get("ev", ()):
                ev()
            a(s["mf"](s.get("reg")))
            if i % 2 == 1:
                regs = []
                for k in (i + 1, i + 2):
                    if k < n and "reg" in slots[k]:
                        regs += [("a", slots[k]["reg"] + q) for q in range(4)]
                a.wait_regs(regs)
            since_dma += 1
            did_vm = False
            if since_dma >= dma_every or (since_dma >= 2 and self.vq):
                if self.vq:
                    ins, tag = self.vq.pop(0)
                    for t in ins[:-1]:
                        a(t)
                    a(ins[-1], tag=tag)
                    did_vm = True
                    since_dma = max(0, since_dma - 2)
                elif self.dma_avail():
                    self.issue_dma()
                    did_vm = True
                    since_dma = 0
            if i + pf < len(allslots):
                read(i + pf)
            if did_vm:
                continue
            elig = [f for f in fillers if f[1] <= i]
            if not elig:
                continue
            quota = free
            acc = 0
            for f in elig:
                acc += cost(f[0]) if isinstance(f[0], str) else 0
                gaps = max(1, (f[2] - i) * (dma_every - 1) // dma_every)
                quota = max(quota, -(-acc // gaps))
            used = 0
            while fillers and fillers[0][1] <= i:
                c = cost(fillers[0][0]) if isinstance(fillers[0][0], str) else 0
                if used + c > quota and used > 0:
                    break
                self._fill(fillers.pop(0))
                used += c
        for f in fillers:
            self._fill(f)

    def _fill(self, f):
        if isinstance(f[0], str):
            self.a(f[0])
        else:
            f[0]()

    def flush_vq(self):
        while self.vq:
            ins, tag = self.vq.pop(0)
            for t in ins[:-1]:
                self.a(t)
            self.a(ins[-1], tag=tag)


def make_srd(a, n, ptr_lo, nbytes):
    a(f"s_mov_b32 s{n}, s{ptr_lo}")
    a(f"s_and_b32 s{n+1}, s{ptr_lo+1}, 0xffff")
    a(f"s_mov_b32 s{n+2}, {nbytes}")
    a(f"s_mov_b32 s{n+3}, 0x20000")


vLANE, vHI, vT0, vT1, vT2, vT3 = 1, 2, 3, 4, 5, 6
vXO = 7
vXA = 9
vM, vRS = 13, 14
vS = 15
XR = 64


def prologue_ids(a):
    a("s_cmp_ge_u32 s2, 256")
    a("s_cbranch_scc1 L_end")
    stamp(a, "start")
    a("s_load_dwordx16 s[64:79], s[0:1], 0")
    a("s_load_dwordx4 s[80:83], s[0:1], 64")
    a("s_load_dwordx2 s[84:85], s[0:1], 80")
    if CODEPF:
        a("s_getpc_b64 s[6:7]")
        a("s_lshr_b32 s4, s2, 3")
        a("s_lshl_b32 s4, s4, 12")
        a(f"v_lshrrev_b32 v{vT0}, 6, v0")
        a(f"v_and_b32 v{vT1}, 7, v0")
        a(f"v_lshl_add_u32 v{vT0}, v{vT0}, 3, v{vT1}")
        a(f"v_lshl_add_u32 v{vT0}, v{vT0}, 7, s4")
        a(f"v_min_u32 v{vT0}, L_end-main_kernel-256, v{vT0}")
        a("s_mov_b64 exec, 0xff")
        a(f"global_load_dword a255, v{vT0}, s[6:7]")
        a("s_mov_b64 exec, -1")
    a(f"v_and_b32 v{vLANE}, 63, v0")
    a(f"v_lshrrev_b32 v{vT0}, 6, v0")
    a(f"v_readfirstlane_b32 s{sW}, v{vT0}")
    a(f"v_lshrrev_b32 v{vHI}, 5, v{vLANE}")
    a("s_and_b32 s3, s2, 7")
    a("s_lshr_b32 s4, s2, 3")
    a(f"s_and_b32 s{sRB}, s4, 7")
    a("s_and_b32 s5, s3, 1")
    a("s_lshl_b32 s5, s5, 3")
    a(f"s_add_u32 s{sRB}, s{sRB}, s5")
    a("s_lshr_b32 s4, s4, 3")
    a("s_lshr_b32 s3, s3, 1")
    a(f"s_mul_i32 s{sWBASE}, s{sW}, {REG}")
    a(f"s_lshl_b32 s5, s{sRB}, 2")
    a(f"s_add_u32 s5, s5, s{sW}")
    a(f"s_mul_i32 s{sXo0}, s5, {32*1152}")
    a(f"s_add_u32 s{sXo1}, s{sXo0}, {16*1152}")
    a(f"s_mul_i32 s{sOUT}, s5, {36*1024}")
    a(f"s_mov_b32 s{sLO}, 0x00003f80")
    a(f"s_mov_b32 s{sHI}, 0x3f800000")
    a(f"s_mov_b32 s{sONES}, 0x3f803f80")
    a(f"s_mov_b32 s{sMASK}, 0xffff0000")
    a(f"s_mov_b32 s{sL2E}, {LOG2E:#x}")
    a(f"s_mov_b32 s{sM2LN2}, {M2LN2:#x}")
    a(f"v_lshrrev_b32 v{vT0}, 3, v{vLANE}")
    a(f"v_mul_u32_u24 v{vT0}, 1152, v{vT0}")
    a(f"v_lshrrev_b32 v{vT1}, 4, v{vLANE}")
    a(f"v_and_b32 v{vT2}, 7, v{vLANE}")
    a(f"v_xor_b32 v{vT1}, v{vT1}, v{vT2}")
    if os.environ.get("NOSWZ"):
        a(f"v_mov_b32 v{vT1}, v{vT2}")
    a(f"v_lshl_add_u32 v{vXO}, v{vT1}, 4, v{vT0}")
    a(f"v_xor_b32 v{vT1}, 4, v{vT1}")
    a(f"v_lshl_add_u32 v{vXO+1}, v{vT1}, 4, v{vT0}")
    a(f"v_add_u32 v{vXO+1}, {8*1152}, v{vXO+1}")
    make_srd(a, S_X, 64, 2048 * 1152)
    stamp(a, "karg")


XPERM = [None]
sXR = 54


def x_load(a, lam):
    for rg in range(4):
        if XPERM[0] is None:
            imm, so = 128 * (lam % 3), sXR + 2 * (lam // 3) + (rg >> 1)
            a(f"s_add_u32 m0, s{sWBASE}, {(lam*4+rg)*1024 - imm}")
        else:
            imm, so = 0, sT
            a(f"s_add_u32 m0, s{sWBASE}, {(lam*4+rg)*1024}")
            a(f"s_add_u32 s{sT}, s{sXo0+(rg>>1)}, {128*XPERM[0][lam]}")
        a(f"buffer_load_dwordx4 v{vXO+(rg&1)}, {srd(S_X)}, s{so} offen offset:{imm} lds", tag=("x", lam))


def touch_index(a, dst):
    a(f"s_and_b32 s{sT2}, s{sRB}, 7")
    a(f"s_lshl_b32 s{sT2}, s{sT2}, 8")
    a(f"v_add_u32 v{dst}, s{sT2}, v0")


def light_index(a, dst, n):
    a(f"s_and_b32 s{sT2}, s{sRB}, 7")
    a(f"s_lshl_b32 s{sT2}, s{sT2}, 2")
    a(f"s_add_u32 s{sT2}, s{sT2}, s{sW}")
    a(f"s_mul_i32 s{sT2}, s{sT2}, {n}")
    a(f"v_add_u32 v{dst}, s{sT2}, v{vLANE}")


def prologue_x(a):
    for lam in range(XAHEAD):
        x_load(a, lam)
    stamp(a, "xiss")
    make_srd(a, S_WS, 84, WS_SIZE)
    make_srd(a, S_DBG, 82, 256)
    a(f"v_and_b32 v{vT0}, 31, v{vLANE}")
    a(f"v_lshrrev_b32 v{vT1}, 3, v{vT0}")
    a(f"v_lshlrev_b32 v{vT1}, 10, v{vT1}")
    a(f"v_and_b32 v{vT2}, 7, v{vT0}")
    a(f"v_lshl_add_u32 v{vT1}, v{vT2}, 7, v{vT1}")
    a(f"v_add_u32 v{vT1}, s{sWBASE}, v{vT1}")
    a(f"v_bfe_u32 v{vT2}, v{vT0}, 1, 3")
    a(f"v_xor_b32 v{vT2}, v{vT2}, v{vHI}")
    for km in range(4):
        a(f"v_xor_b32 v{vT3}, {2*km}, v{vT2}")
        a(f"v_lshl_add_u32 v{vXA+km}, v{vT3}, 4, v{vT1}")


def tr_lanepart(a, dst, kind, tmp):
    hi_bytes, perm = kind
    a(f"v_bfe_u32 v{dst}, v{vLANE}, 2, 2")
    a(f"v_lshlrev_b32 v{dst}, 6, v{dst}")
    a(f"v_bfe_u32 v{tmp}, v{vLANE}, 4, 1")
    a(f"v_lshl_add_u32 v{dst}, v{tmp}, 5, v{dst}")
    if perm:
        a(f"v_and_b32 v{tmp}, 1, v{vLANE}")
        a(f"v_lshl_add_u32 v{dst}, v{tmp}, 4, v{dst}")
        a(f"v_bfe_u32 v{tmp}, v{vLANE}, 1, 1")
        a(f"v_lshl_add_u32 v{dst}, v{tmp}, 3, v{dst}")
    else:
        a(f"v_and_b32 v{tmp}, 3, v{vLANE}")
        a(f"v_lshl_add_u32 v{dst}, v{tmp}, 3, v{dst}")
    a(f"v_mul_u32_u24 v{tmp}, {hi_bytes}, v{vHI}")
    a(f"v_add_u32 v{dst}, v{dst}, v{tmp}")


def rne_bf16(a, reg):
    a(f"v_cvt_pk_bf16_f32 v{reg}, v{reg}, v{reg}")
    a(f"v_and_b32 v{reg}, s{sMASK}, v{reg}")


def half_sum(a, reg, tmp):
    a(f"v_mov_b32 v{tmp}, v{reg}")
    a(f"v_permlane32_swap_b32 v{reg}, v{tmp}")
    a(f"v_add_f32 v{reg}, v{reg}, v{tmp}")


def layernorm(a, eng, lam_events, lbl, tmpbase, conv_events={}):
    for i in range(4):
        a(f"v_mov_b32 v{vS+i}, 0")
    def stats(lam):
        for k in range(4 * lam, 4 * lam + 4):
            for q in range(4):
                r = XR + 4 * k + q
                a(f"v_dot2c_f32_bf16 v{vS+(q&1)}, s{sONES}, v{r}")
                a(f"v_dot2c_f32_bf16 v{vS+2+(q&1)}, v{r}, v{r}")
    for lam in range(9):
        a.wait_tag(("x", lam))
        stamp(a, f"x{lam}")
        if lam + XAHEAD < 9:
            x_load(a, lam + XAHEAD)
        for km in range(4):
            a(f"ds_read_b128 {vr(XR+4*(4*lam+km))}, v{vXA+km} offset:{lam*4096}")
        if lam >= 1:
            stats(lam - 1)
            for ev in lam_events.get(lam - 1, ()):
                ev()
    stats(8)
    for ev in lam_events.get(8, ()):
        ev()
    stamp(a, "stats")
    a(f"v_add_f32 v{vS}, v{vS}, v{vS+1}")
    a(f"v_add_f32 v{vS+2}, v{vS+2}, v{vS+3}")
    half_sum(a, vS, vS + 1)
    half_sum(a, vS + 2, vS + 3)
    inv = 0x3AE38E39
    a(f"v_mul_f32 v{vS}, {inv:#x}, v{vS}")
    a(f"v_mul_f32 v{vS+2}, {inv:#x}, v{vS+2}")
    a(f"v_mov_b32 v{vM}, v{vS}")
    rne_bf16(a, vM)
    a(f"v_sub_f32 v{vS+1}, v{vS}, v{vM}")
    a(f"v_sub_f32 v{vM}, 0, v{vM}")
    a(f"v_mul_f32 v{vS+3}, v{vS}, v{vS}")
    a(f"v_sub_f32 v{vRS}, v{vS+2}, v{vS+3}")
    G = 8
    for base in range(0, 144, G):
        for q in range(G):
            a(f"v_dot2_f32_bf16 v{tmpbase+2*q}, v{XR+base+q}, s{sLO}, v{vM}")
            a(f"v_dot2_f32_bf16 v{tmpbase+2*q+1}, v{XR+base+q}, s{sHI}, v{vM}")
        if base // G in conv_events:
            conv_events[base // G]()
        else:
            eng.issue_dma(1)
        for q in range(G):
            a(f"v_cvt_pk_bf16_f32 v{XR+base+q}, v{tmpbase+2*q}, v{tmpbase+2*q+1}")
    a(f"v_mul_f32 v{vS+2}, 0x41800000, v{vRS}")
    a(f"v_cmp_nge_f32 vcc, v{vS+2}, v{vS+3}")
    a(f"s_cbranch_vccz {lbl}")
    a(f"v_mov_b32 v{vS+2}, 0")
    a(f"v_mov_b32 v{vS+3}, 0")
    for r in range(144):
        a(f"v_dot2c_f32_bf16 v{vS+2+(r&1)}, v{XR+r}, v{XR+r}")
    a(f"v_add_f32 v{vS+2}, v{vS+2}, v{vS+3}")
    half_sum(a, vS + 2, vS + 3)
    a(f"v_mul_f32 v{vS+2}, {inv:#x}, v{vS+2}")
    a(f"v_mul_f32 v{vS+1}, v{vS+1}, v{vS+1}")
    a(f"v_sub_f32 v{vRS}, v{vS+2}, v{vS+1}")
    a.nop(4)
    a.label(lbl)
    a(f"v_max_f32 v{vRS}, 0, v{vRS}")
    rne_bf16(a, vRS)
    a(f"v_add_f32 v{vRS}, 0x3727c5ac, v{vRS}")
    rne_bf16(a, vRS)
    a(f"v_sqrt_f32 v{vRS}, v{vRS}")
    rne_bf16(a, vRS)
    a(f"v_lshrrev_b32 v{vM}, 16, v{vRS}")
    a(f"v_rcp_f32 v{vRS}, v{vRS}")


def out_store_fillers(eng, acc_tiles, stage_regs, soff_const, lo, hi, mods=""):
    F = []
    for u in range(4):
        t, hf = u >> 1, u & 1
        for q in range(4):
            s = acc_tiles[t] + 8 * hf + 2 * q
            F.append((f"v_cvt_pk_bf16_f32 v{stage_regs+4*u+q}, v{s}, v{s+1}", lo, hi))
        def q_store(u=u):
            ins = []
            if u == 0:
                ins.append(f"s_add_u32 s{sT2}, s{sOUT}, {soff_const}")
            ins.append(f"buffer_store_dwordx4 {vr(stage_regs+4*u)}, v{vST}, {srd(S_WS)}, s{sT2} offen offset:{1024*u}{mods}")
            eng.vq.append((ins, "out"))
        F.append((q_store, lo, hi))
    return F


vST = 19
vD = 20
vB1 = 26
vBI = 30
vC = 31


def ffn_role(a):
    a("s_mul_i32 s3, s3, 3")
    a("s_add_u32 s3, s3, s4")
    a(f"s_sub_u32 s{sJ}, s3, 1")
    XPERM[0] = None
    for c in range(3):
        a(f"s_add_u32 s5, s4, {c + 2}")
        a(f"s_sub_u32 s6, s5, 3")
        a(f"s_cmp_ge_u32 s6, 3")
        a(f"s_cselect_b32 s7, 3, 0")
        a(f"s_sub_u32 s{60+c}, s6, s7")
        a(f"s_mul_i32 s5, s{60+c}, 384")
        a(f"s_add_u32 s{sXR+2*c}, s{sXo0}, s5")
        a(f"s_add_u32 s{sXR+2*c+1}, s{sXo1}, s5")
    make_srd(a, S_WA, 74, 576 * 9216)
    make_srd(a, S_WB, 78, 4608 * 1152)
    make_srd(a, S_AUX, 76, 4608 * 2)
    a(f"s_mul_i32 s{sT}, s{sJ}, 768")
    a(f"v_lshlrev_b32 v{vT0}, 2, v0")
    a(f"v_min_u32 v{vT0}, 764, v{vT0}")
    a(f"buffer_load_dword v32, v{vT0}, {srd(S_AUX)}, s{sT} offen")
    a(f"v_lshlrev_b32 v33, 1, v{vT0}")
    if TOUCH:
        light_index(a, vT1, 18)
        a(f"v_mul_u32_u24 v{vT1}, 9216, v{vT1}")
        a("s_mov_b64 exec, 0x3ffff")
        a(f"buffer_load_dword a254, v{vT1}, {srd(S_WA)}, s{sT} offen")
        a("s_mov_b64 exec, -1")
    prologue_x(a)
    a(f"v_lshlrev_b32 v{vT1}, 2, v{vHI}")
    a(f"v_bfe_u32 v{vT2}, v{vLANE}, 2, 2")
    a(f"v_add_u32 v{vT1}, v{vT1}, v{vT2}")
    a(f"v_bfe_u32 v{vT2}, v{vLANE}, 4, 1")
    a(f"v_lshlrev_b32 v{vT2}, 6, v{vT2}")
    a(f"v_and_b32 v{vT3}, 3, v{vLANE}")
    a(f"v_lshl_add_u32 v{vT2}, v{vT3}, 4, v{vT2}")
    a(f"v_mul_u32_u24 v{vD}, 9216, v{vT1}")
    a(f"v_add_u32 v{vD}, v{vD}, v{vT2}")
    a(f"v_add_u32 v{vD+1}, {8*9216-1024}, v{vD}")
    a(f"v_add_u32 v{vD+2}, {16*9216-2048}, v{vD}")
    a(f"v_mul_u32_u24 v{vD+3}, 1152, v{vT1}")
    a(f"v_add_u32 v{vD+3}, v{vD+3}, v{vT2}")
    a(f"v_add_u32 v{vD+4}, {8*1152-1024}, v{vD+3}")
    a(f"v_add_u32 v{vD+5}, {16*1152-2048}, v{vD+3}")
    a(f"s_mul_i32 s{sA}, s{sW}, {48*9216}")
    a(f"s_add_u32 s{sA}, s{sA}, s{sT}")
    for c in range(3):
        a(f"s_mul_i32 s{60+c}, s{60+c}, {192*9216}")
        a(f"s_add_u32 s{60+c}, s{60+c}, s{sA}")
    a(f"s_mul_i32 s{sB}, s{sJ}, 384")
    a(f"s_mul_i32 s{sT2}, s{sW}, 48")
    a(f"s_add_u32 s{sB}, s{sB}, s{sT2}")
    a(f"s_mul_i32 s{sB}, s{sB}, 1152")
    a(f"s_mul_i32 s{sT2}, s{sJ}, {SLAB}")
    a(f"s_add_u32 s{sOUT}, s{sOUT}, s{sT2}")
    a(f"v_lshlrev_b32 v{vST}, 4, v{vLANE}")
    tr_lanepart(a, vB1, (1024, False), vT3)
    for i in range(1, 4):
        a(f"v_add_u32 v{vB1+i}, {REG*i}, v{vB1}")
    a(f"v_lshlrev_b32 v{vBI}, 4, v{vHI}")
    a(f"v_add_u32 v{vBI}, {SPARE}, v{vBI}")
    a(f"v_mov_b32 v{vC}, {LN2:#x}")

    vTI, vTA = 244, 245
    def touch_addr(dst, first, rows, magic, shift, rowbytes, limit):
        o = [f"v_add_u32 v{dst}, {first}, v{vTI}",
             f"v_min_u32 v{dst}, {limit-1}, v{dst}",
             f"v_mul_u32_u24 v{dst+1}, {magic}, v{dst}",
             f"v_lshrrev_b32 v{dst+1}, {shift}, v{dst+1}",
             f"v_mul_u32_u24 v{dst}, {rowbytes}, v{dst}",
             f"v_mul_u32_u24 v{dst+1}, {rows*rowbytes-128}, v{dst+1}",
             f"v_sub_u32 v{dst}, v{dst}, v{dst+1}"]
        return o
    a(f"s_mul_i32 s{sC0}, s{sJ}, 768")
    a(f"s_mul_i32 s{sC1}, s{sJ}, {384*1152}")
    if TOUCH:
        touch_index(a, vTI)
        for t in touch_addr(vTA + 4, 576, 576, 3641, 21, 9216, 3456): a(t)
        for t in touch_addr(vTA + 6, 576 + 2048, 576, 3641, 21, 9216, 3456): a(t)

    eng = Engine(a, 144, 12, 6)
    for st in range(36):
        dma = []
        for b in range(6):
            gq, i = divmod(b, 3)
            ins = []
            if i == 0:
                ins.append(f"s_add_u32 m0, s{sWBASE}, {(st%6)*6144 + gq*3072}")
                if st < 18:
                    p, kc = divmod(st, 3)
                    ins.append(f"s_add_u32 s{sT}, s{60+kc}, {24*gq*9216 + p*128}")
                else:
                    dp, kc = divmod(st - 18, 2)
                    ins.append(f"s_add_u32 s{sT}, s{sB}, {(kc*192+24*gq)*1152 + dp*128}")
            if st < 18:
                ins.append(f"buffer_load_dwordx4 v{vD+i}, {srd(S_WA)}, s{sT} offen offset:{1024*i} lds")
            else:
                ins.append(f"buffer_load_dwordx4 v{vD+3+i}, {srd(S_WB)}, s{sT} offen offset:{1024*i} lds")
            dma.append(ins)
        eng.add_stage(dma, st - 6)

    def bias_table():
        a(f"v_lshlrev_b32 v34, 16, v32")
        a(f"v_and_b32 v35, s{sMASK}, v32")
        a(f"v_mul_f32 v34, s{sL2E}, v34")
        a(f"v_mul_f32 v35, s{sL2E}, v35")
        a(f"v_add_u32 v33, {SPARE}, v33")
        a(f"ds_write_b64 v33, v[34:35]")
    ev = {8: [bias_table]}
    cev = {12: lambda: a(f"buffer_load_dword a252, v{vTA+4}, {srd(S_WA)}, s{sC0} offen")} if TOUCH else {}
    layernorm(a, eng, ev, "L_ffn_var", 32, cev)
    a(f"v_mul_f32 v{vRS}, s{sL2E}, v{vRS}")
    a.wait(lg=0)
    stamp(a, "ln")
    eng.sync(ready=0)
    stamp(a, "go")

    HA = [(208, 224), (64, 80)]
    ACT = 96
    STG = 192
    TMP = 32
    slots = []
    fill = []

    def add_slot(st, kl, t, acc, bop, first, g2):
        piece, kk = divmod(kl, 3)
        base = (st % 6) * 6144 + t * 256
        if not g2:
            offs = [base + kk * 2048 + eh * 512 for eh in range(2)]
        else:
            offs = [base + (2 * kk + eh) * 1024 for eh in range(2)]
        breg = (vB2 if g2 else vB1) + piece
        def rd(r):
            return [f"ds_read_b64_tr_b16 {ar(r+2*eh,2)}, v{breg} offset:{offs[eh]}" for eh in range(2)]
        def mf(r):
            return f"v_mfma_f32_32x32x16_bf16 {vr(acc,16)}, {ar(r)}, {bop}, {'0' if first else vr(acc,16)}"
        s = dict(st=st, rd=rd, mf=mf, ev=[])
        if kl == 6 and t == 0:
            s["ev"].append(lambda st=st: eng.sync(ready=st + 1, consumed=st - 1))
        slots.append(s)

    vB2 = 240
    def act_fillers(p, lo, hi):
        F = []
        for t in range(2):
            T = 2 * p + t
            acc = HA[p & 1][t]
            bias = TMP + 16 * 0
            for g in range(4):
                bb = TMP + 4 * (g & 1)
                e = TMP + 8 + 8 * (g & 1)
                F.append((f"ds_read_b128 {vr(bb)}, v{vBI} offset:{(32*T+8*g)*4}", lo, hi))
                x = [acc + 4 * g + q for q in range(4)]
                for q in range(4): F.append((f"v_fma_f32 v{x[q]}, v{x[q]}, v{vRS}, v{bb+q}", lo, hi))
                for q in range(4): F.append((f"v_exp_f32 v{e+q}, v{x[q]}", lo, hi))
                for q in range(4): F.append((f"v_add_f32 v{e+4+q}, 2.0, v{e+q}", lo, hi))
                for q in range(4): F.append((f"v_fma_f32 v{e+q}, v{e+q}, v{e+4+q}, 2.0", lo, hi))
                for q in range(4): F.append((f"v_rcp_f32 v{e+q}, v{e+q}", lo, hi))
                for q in range(4): F.append((f"v_fma_f32 v{e+q}, v{e+q}, s{sM2LN2}, v{vC}", lo, hi))
                for q in range(4): F.append((f"v_mul_f32 v{x[q]}, v{x[q]}, v{e+q}", lo, hi))
                for q in range(2): F.append((f"v_cvt_pk_bf16_f32 v{ACT+8*T+2*g+q}, v{x[2*q]}, v{x[2*q+1]}", lo, hi))
        G = []
        groups = [F[i:i + 31] for i in range(0, len(F), 31)]
        G.append(groups[0][0])
        for i, g in enumerate(groups):
            G += g[1:5]
            if i + 1 < len(groups): G.append(groups[i + 1][0])
            G += g[5:]
        return G

    for p in range(6):
        for kc in range(3):
            for kl in range(12):
                k = kc * 12 + kl
                for t in range(2):
                    bop = vr(XR + 4 * k) if p == 0 else ar(4 * k)
                    add_slot(3 * p + kc, kl, t, HA[p & 1][t], bop, k == 0, False)
        if p == 0:
            for r in range(144):
                fill.append((f"v_accvgpr_write_b32 a{r}, v{XR+r}", 0, 70))
            if TOUCH:
                for i in range(2):
                    for t in touch_addr(vTA + 2 * i, 2048 * i, 384, 2731, 20, 1152, 3456):
                        fill.append((t, 0, 70))
        else:
            fill += act_fillers(p - 1, 72 * p + 2, 72 * p + 70)
    def mk_b2():
        tr_lanepart(a, vB2, (512, True), vT3)
        for i in range(1, 4):
            a(f"v_add_u32 v{vB2+i}, {REG*i}, v{vB2}")
    mk_b2()
    fill += act_fillers(5, 434, 432 + 38)
    for dp in range(9):
        for kc in range(2):
            for kl in range(12):
                k = kc * 12 + kl
                for t in range(2):
                    add_slot(18 + 2 * dp + kc, kl, t, HA[dp & 1][t], vr(ACT + 4 * k), k == 0, True)
        if dp >= 1:
            lo = 432 + 48 * dp
            fill += out_store_fillers(eng, HA[(dp - 1) & 1], STG, (dp - 1) * 4096, lo + 3, lo + 30)
    slots[432]["ev"].append(lambda: stamp(a, "g1"))
    if TOUCH:
        slots[60]["ev"].append(lambda: eng.vq.append(([f"buffer_load_dword a251, v{vTA+6}, {srd(S_WA)}, s{sC0} offen"], "touch")))
        for i, sl in enumerate((150, 250)):
            slots[sl]["ev"].append(lambda i=i: eng.vq.append(([f"buffer_load_dword a{250-i}, v{vTA+2*i}, {srd(S_WB)}, s{sC1} offen"], "touch")))
    eng.run(slots, fill, dma_every=3)
    stamp(a, "g2")
    eng.flush_vq()
    for f in out_store_fillers(eng, HA[0], STG, 8 * 4096, 0, 0):
        eng._fill(f)
        eng.flush_vq()
    if PROF:
        a.wait(vm=0)
    stamp(a, "end")
    stamp_flush(a, srd(S_WS), MAIN_ID)
    a("s_branch L_end")


def header(launches):
    L = [f"; @launch kernel={k} grid=({g},1,1) block=({b},1,1) lds={lds}" for k, g, b, lds in launches]
    L += ['.amdgcn_target "amdgcn-amd-amdhsa--gfx950"', ".text"]
    return L


def kd(name, vgpr, accum, sgpr=102):
    return [f".amdhsa_kernel {name}", f"  .amdhsa_next_free_vgpr {vgpr}", f"  .amdhsa_next_free_sgpr {sgpr}",
            f"  .amdhsa_accum_offset {accum}", "  .amdhsa_group_segment_fixed_size 0", "  .amdhsa_kernarg_size 88",
            "  .amdhsa_user_sgpr_count 2", "  .amdhsa_user_sgpr_kernarg_segment_ptr 1",
            "  .amdhsa_system_sgpr_workgroup_id_x 1", "  .amdhsa_float_denorm_mode_32 3", ".end_amdhsa_kernel"]


def build(path, with_attn=True):
    import copy
    a = Asm()
    name1 = "main_kernel"
    a.raw(f".globl {name1}"); a.raw(".p2align 8"); a.raw(f".type {name1},@function"); a.label(name1)
    prologue_ids(a)
    a("s_cmp_eq_u32 s4, 0")
    a("s_cbranch_scc1 L_attn")
    snap = (copy.deepcopy(a.vm), copy.deepcopy(a.lg), a.smem)
    ffn_role(a)
    a.label("L_attn")
    a.vm, a.lg, a.smem = snap
    a.nop(4)
    if with_attn:
        from attn import attn_role
        attn_role(a)
    a.label("L_end")
    a.raw("s_endpgm")
    from comb import comb_kernel
    b = Asm()
    name2 = "comb_kernel"
    b.raw(f".globl {name2}"); b.raw(".p2align 8"); b.raw(f".type {name2},@function"); b.label(name2)
    nv = comb_kernel(b)
    L = header([(name1, 256, 256, LDS_BYTES), (name2, 288, 256, 0)])
    L += a.lines + b.lines
    L += ['.section .rodata,"a"', ".p2align 6"] + kd(name1, 512, 256) + [".p2align 6"] + kd(name2, nv, (nv + 3) // 4 * 4)
    open(path, "w").write("\n".join(L) + "\n")
    print("instr stats", a.stats, "lines", len(L))


if __name__ == "__main__":
    build(sys.argv[1], with_attn=(len(sys.argv) < 3 or sys.argv[2] != "noattn"))
```
